```python
import torch

def _softmax(x, axis=-1):
    return torch.softmax(x, dim=axis)
def _gelu(x):
    return torch.nn.functional.gelu(x, approximate="tanh")
def _silu(x):
    return torch.nn.functional.silu(x)
def _sigmoid(x):
    return torch.sigmoid(x)
def _layernorm(x, axis=-1, eps=1e-5):
    m = x.mean(dim=axis, keepdim=True)
    v = x.var(dim=axis, keepdim=True, unbiased=False)
    return (x - m) / torch.sqrt(v + eps)
def _scatter_add(tgt, idx, src, axis=0):
    return tgt.clone().index_add_(axis, idx, src)
def _segment_sum(src, seg, n):
    out = torch.zeros((n,) + src.shape[1:], dtype=src.dtype)
    return out.index_add_(0, seg, src)
def _pad(x, pw):
    flat = tuple(v for pair in reversed(pw) for v in pair)
    return torch.nn.functional.pad(x, flat)

kernel_name = 'sequential_preLN__ssm_conv_s4d__mixer_s_mlp__prompt'

def setup_inputs():

    _w = (lambda a: (lambda t: t.to(torch.bfloat16) if t.is_floating_point() else t)(torch.as_tensor(a)))
    def _A_setup():
        Bsz, L, D, N = 1, 2048, 640, 192
        return {
            "u": _w((lambda *s: torch.randn(*s, dtype=torch.bfloat16) * 0.05)(Bsz, L, D)),
            "log_A_real": _w((lambda *s: torch.randn(*s, dtype=torch.bfloat16) * 6.4)(D, N) * 0.5),
            "A_imag": _w((lambda *s: torch.randn(*s, dtype=torch.bfloat16) * 0.05)(D, N) * 3.14),
            "C_real": _w((lambda *s: torch.randn(*s, dtype=torch.bfloat16) * 0.05)(D, N) / N ** 0.5),
            "C_imag": _w((lambda *s: torch.randn(*s, dtype=torch.bfloat16) * 0.05)(D, N) / N ** 0.5),
            "log_dt": _w((lambda *s: torch.randn(*s, dtype=torch.bfloat16) * 0.05)(D) * 0.5 - 4.0),
            "D_skip": _w((lambda *s: torch.randn(*s, dtype=torch.bfloat16) * 0.05)(D)),
        }
    _A_in = _A_setup()

    def _B_setup():
        B, S, D, F = 1, 2048, 640, 1536
        return {
            "x":  _w((lambda *s: torch.randn(*s, dtype=torch.bfloat16) * 0.05)(B, S, D)),
            "w1": _w((lambda *s: torch.randn(*s, dtype=torch.bfloat16) * 6.4)(D, D) * (D ** -0.5)),
            "w2": _w((lambda *s: torch.randn(*s, dtype=torch.bfloat16) * 6.4)(D, D) * (D ** -0.5)),
            "w3": _w((lambda *s: torch.randn(*s, dtype=torch.bfloat16) * 6.4)(D, F) * (D ** -0.5)),
            "w4": _w((lambda *s: torch.randn(*s, dtype=torch.bfloat16) * 3.2)(F, D) * (F ** -0.5)),
        }
    _B_in = _B_setup()

    return {
        "A_u": _A_in["u"],
        "A_log_A_real": _A_in["log_A_real"],
        "A_A_imag": _A_in["A_imag"],
        "A_C_real": _A_in["C_real"],
        "A_C_imag": _A_in["C_imag"],
        "A_log_dt": _A_in["log_dt"],
        "A_D_skip": _A_in["D_skip"],
        "B_x": _B_in["x"],
        "B_w1": _B_in["w1"],
        "B_w2": _B_in["w2"],
        "B_w3": _B_in["w3"],
        "B_w4": _B_in["w4"],
    }

def reference(A_u, A_log_A_real, A_A_imag, A_C_real, A_C_imag, A_log_dt, A_D_skip, B_x, B_w1, B_w2, B_w3, B_w4):
    def _A_ref(u, log_A_real, A_imag, C_real, C_imag, log_dt, D_skip):
        L = u.shape[1]
        dt = torch.exp(log_dt)
        A = -torch.exp(log_A_real) + 1j * A_imag
        C = (C_real + 1j * C_imag) * dt[:, None]
        pos = (lambda x, dt: x.to(dt))(torch.arange(L), log_dt.dtype)
        P = torch.exp((A * dt[:, None])[:, :, None] * pos[None, None, :])
        K = 2.0 * torch.einsum("dn,dnl->dl", C, P).real
        L2 = 2 * L
        u_t = (lambda x, *d: x.permute(*d))(u, 0, 2, 1)
        Kf = (lambda x, *a, **k: torch.fft.rfft(x.float(), *a, **k))(K, L2)
        Uf = (lambda x, *a, **k: torch.fft.rfft(x.float(), *a, **k))(u_t, L2)
        y = (lambda x, *a, **k: torch.fft.irfft(x, *a, **k).to(torch.bfloat16))(Uf * Kf[None, :, :], L2)[:, :, :L]
        y = (lambda x, *d: x.permute(*d))(y, 0, 2, 1)
        return y + u * D_skip[None, None, :]

    def _B_ref(x, w1, w2, w3, w4):
        B, S, D = x.shape
        h = _gelu(_layernorm(x, axis=-1) @ w1)
        c = D // 4
        g0 = _pad(h[:, :, 0*c:1*c], ((0, 0), (1, 0), (0, 0)))[:, :S, :]
        g1 = _pad(h[:, :, 1*c:2*c], ((0, 0), (0, 1), (0, 0)))[:, 1:, :]
        g2 = _pad(h[:, :, 2*c:3*c], ((0, 0), (2, 0), (0, 0)))[:, :S, :]
        g3 = _pad(h[:, :, 3*c:   ], ((0, 0), (0, 2), (0, 0)))[:, 2:, :]
        hs = torch.concatenate([g0, g1, g2, g3], axis=-1) @ w2
        x1 = x + hs
        h2 = _gelu(_layernorm(x1, axis=-1) @ w3) @ w4
        return x1 + h2

    x = A_u
    h = x + _A_ref(_layernorm(x, axis=-1), A_log_A_real, A_A_imag, A_C_real, A_C_imag, A_log_dt, A_D_skip)
    h2 = h + _B_ref(_layernorm(h, axis=-1), B_w1, B_w2, B_w3, B_w4)
    return h2
```

```python
import re

REG_RE = re.compile(r'\b([vas])(\d+)\b|\b([vas])\[(\d+):(\d+)\]|\b(vcc|exec|m0)(_lo|_hi)?\b')

def regs_of(op):
    out = set()
    for m in REG_RE.finditer(op):
        if m.group(1): out.add((m.group(1), int(m.group(2))))
        elif m.group(3):
            for i in range(int(m.group(4)), int(m.group(5)) + 1): out.add((m.group(3), i))
        else: out.add((m.group(6), 0))
    return out

def split_ops(s):
    ops, depth, cur = [], 0, ''
    for ch in s:
        if ch == '[': depth += 1
        if ch == ']': depth -= 1
        if ch == ',' and depth == 0: ops.append(cur.strip()); cur = ''
        else: cur += ch
    if cur.strip(): ops.append(cur.strip())
    return ops

TRANS = ('v_exp_', 'v_log_', 'v_rcp_', 'v_rsq_', 'v_sqrt_', 'v_sin_', 'v_cos_')

class I:
    def __init__(self, text):
        self.text = text
        t = text.split(';')[0].strip()
        self.label = t.endswith(':')
        self.dirv = t.startswith('.') or t == ''
        if self.label or self.dirv:
            self.op = ''; self.w = set(); self.r = set(); self.kind = 'x'; return
        parts = t.split(None, 1)
        self.op = op = parts[0]
        ops = split_ops(parts[1]) if len(parts) > 1 else []
        if ops: ops[-1] = ops[-1].split()[0] if not ops[-1].startswith('-') or True else ops[-1]
        self.ops = ops
        R = [regs_of(o) for o in ops]
        w, r = set(), set()
        self.A = self.B = self.C = set()
        if op.startswith('v_mfma'):
            self.kind = 'mfma'; w = R[0]; self.A, self.B, self.C = R[1], R[2], R[3]; r = R[1] | R[2] | R[3]
            self.passes = 8 if '32x32' in op else 4
        elif op.startswith('v_'):
            self.kind = 'valu'
            if op.startswith('v_permlane') and 'swap' in op: w = R[0] | R[1]; r = R[0] | R[1]
            elif op.startswith('v_cmp'): w = R[0]; r = set().union(*R[1:])
            elif '_co_' in op: w = R[0] | R[1]; r = set().union(*R[2:])
            elif op == 'v_nop': pass
            else:
                w = R[0]; r = set().union(*R[1:]) if len(R) > 1 else set()
                if op.startswith(('v_fmac', 'v_dot2c', 'v_writelane')) or 'dpp' in op or 'sdwa' in op or '_d16' in op or op.startswith('v_cvt_f16'): r |= R[0]
                if op.startswith('v_cndmask') and len(ops) == 3: r.add(('vcc', 0))
            if op.startswith('v_cmpx'): w.add(('exec', 0))
        elif op.startswith('ds_'):
            self.kind = 'ds'
            if op.startswith(('ds_read', 'ds_bpermute', 'ds_permute', 'ds_swizzle')): w = R[0]; r = set().union(*R[1:])
            else: r = set().union(*R)
        elif op.startswith(('buffer_', 'global_')):
            self.kind = 'vmem'
            self.lds = ' lds' in t
            if '_load' in op and not self.lds: w = R[0]; r = set().union(*R[1:])
            else: r = set().union(*R)
            if 'd16' in op: r |= R[0]
            self.wide = ('store' in op and ('x4' in op or 'x3' in op))
            if self.wide: self.data = R[0] if op.startswith('buffer') else R[1]
        elif op.startswith('s_'):
            self.kind = 'salu'
            if op.startswith(('s_cmp', 's_cbranch', 's_branch', 's_waitcnt', 's_nop', 's_barrier', 's_endpgm', 's_sleep', 's_setprio', 's_bitcmp')): r = set().union(*R) if R else set()
            else:
                w = R[0] if R else set(); r = set().union(*R[1:]) if len(R) > 1 else set()
                if 'saveexec' in op: w = w | {('exec', 0)}
        else:
            raise ValueError(text)
        self.w, self.r = w, r
    def states(self):
        if self.op == 's_nop': return int(self.ops[0], 0) + 1
        return 1

def isv(x): return x[0] in 'va'

def need(p, c):
    n = 0
    pv = {x for x in p.w if isv(x)}
    ps = {x for x in p.w if not isv(x)}
    if p.kind == 'valu':
        if c.kind == 'mfma' and pv & c.r: n = max(n, 2)
        if c.kind == 'mfma' and ('exec', 0) in p.w: n = max(n, 4)
        if c.kind == 'valu':
            if ('dpp' in c.op or c.op.startswith('v_permlane')) and pv & c.r: n = max(n, 2)
            if c.op.startswith(('v_readlane', 'v_readfirstlane')) and pv & c.r: n = max(n, 1)
            if p.op.startswith(TRANS) and pv & c.r: n = max(n, 1)
            if p.op.startswith('v_dot') and pv & (c.r | c.w):
                if c.op == p.op and len(c.ops) == 4 and not (pv & (regs_of(c.ops[1]) | regs_of(c.ops[2]))): pass
                else: n = max(n, 3)
            if ('sdwa' in p.op or 'op_sel' in p.text and not p.op.startswith('v_pk_') or p.op.startswith('v_cvt_f16')) and pv & (c.r | c.w): n = max(n, 1)
            if ps & c.r:
                n = max(n, 4 if c.op.startswith(('v_readlane', 'v_writelane')) else 2)
            if ('exec', 0) in p.w:
                if 'dpp' in c.op: n = max(n, 5)
                if c.op.startswith(('v_readlane', 'v_readfirstlane', 'v_writelane', 'v_permlane')): n = max(n, 4)
        if c.kind in ('vmem', 'ds') and p.op.startswith('v_dot') and pv & c.r: n = max(n, 3)
        if c.kind == 'vmem' and ps & c.r: n = max(n, 5)
        if c.kind == 'salu' and ps & c.r: n = max(n, 2)
    if p.kind == 'mfma':
        big = 12 if p.passes == 8 else 8
        if c.kind == 'mfma':
            if pv & (c.A | c.B): n = max(n, big)
            if pv & c.C and not (pv == c.C and c.passes == p.passes): n = max(n, big - 2)
        elif c.kind in ('valu', 'vmem', 'ds'):
            if pv & (c.r | c.w): n = max(n, big)
            if c.kind == 'valu' and p.C & c.w: n = max(n, 7 if p.passes == 8 else 3)
    if p.kind == 'vmem' and getattr(p, 'wide', False) and c.kind in ('valu', 'mfma', 'ds', 'vmem') and p.data & c.w: n = max(n, 2)
    if p.kind == 'ds' and p.op.startswith(('ds_write_b128', 'ds_write_b96')) and c.kind == 'valu' and p.r & c.w: n = max(n, 2)
    if p.kind == 'salu' and ('m0', 0) in p.w and c.kind == 'vmem' and c.lds: n = max(n, 1)
    return n

class Asm:
    def __init__(self):
        self.ins = []
        self.vm_n = 0; self.vm_done = 0
        self.lg_n = 0; self.lg_done = 0
        self.uid = 0
    def __call__(self, text):
        for line in text.split('\n'):
            line = line.strip()
            if not line: continue
            i = I(line); self.ins.append(i)
            if i.kind == 'vmem': self.vm_n += 1
            if i.kind == 'ds': self.lg_n += 1
            if i.op.startswith(('s_load', 's_memtime', 's_memrealtime')): self.smem = True
        return self
    def vm(self, text):
        self(text); return self.vm_n
    def ds(self, text):
        self(text); return self.lg_n
    def wait_vm(self, tok):
        if tok <= self.vm_done: return
        n = min(self.vm_n - tok, 63)
        self(f's_waitcnt vmcnt({n})'); self.vm_done = self.vm_n - n
    def wait_lg(self, tok):
        if tok <= self.lg_done: return
        n = min(self.lg_n - tok, 15)
        self(f's_waitcnt lgkmcnt({n})'); self.lg_done = self.lg_n - n
    def wait_all_vm(self): self('s_waitcnt vmcnt(0)'); self.vm_done = self.vm_n
    def wait_all_lg(self): self('s_waitcnt lgkmcnt(0)'); self.lg_done = self.lg_n
    def wait_all(self): self('s_waitcnt vmcnt(0) lgkmcnt(0)'); self.vm_done = self.vm_n; self.lg_done = self.lg_n
    def label(self, name): self(f'{name}:')
    def newlabel(self, base):
        self.uid += 1; return f'{base}_{self.uid}'
    def finish(self):
        out = []; real = []
        for c in self.ins:
            if c.kind == 'x':
                out.append(c.text); continue
            dist = 0; pad = 0
            for p in reversed(real[-24:]):
                n = need(p, c)
                if n - dist > pad: pad = n - dist
                dist += p.states()
                if dist >= 13: break
            while pad > 0:
                k = min(pad, 16); nop = I(f's_nop {k-1}'); out.append('  ' + nop.text); real.append(nop); pad -= k
            out.append('  ' + c.text); real.append(c)
        return '\n'.join(out) + '\n'

def V(i, n=1): return f'v{i}' if n == 1 else f'v[{i}:{i+n-1}]'
def A(i, n=1): return f'a{i}' if n == 1 else f'a[{i}:{i+n-1}]'
def S(i, n=1): return f's{i}' if n == 1 else f's[{i}:{i+n-1}]'
```

```python
def setup(g):
    globals().update({k: v for k, v in g.items() if not k.startswith('__')})

WS = None
def ws(): return f's[{R_WS}:{R_WS+3}]'
vL16 = 110
vHR = 100
vST = 98
sNH, sKH, sOWN = 44, 45, 43

def wave_flag(base):
    L = a.newlabel('nofl')
    a(f's_cmp_lg_u32 s{sW}, 0'); a(f's_cbranch_scc1 {L}')
    a(f's_lshl_b32 s{sA}, {base[1]}, 7'); a(f's_add_u32 s{sA}, s{sA}, {base[0]}')
    set_flag(sA, 2)
    a.label(L)

def epoch_write():
    L = a.newlabel('noep')
    a(f's_or_b32 s{sA}, s2, s{sW}'); a(f's_cmp_lg_u32 s{sA}, 0'); a(f's_cbranch_scc1 {L}')
    set_flag(sA, 2)
    a.label(L)

def qreduce(s, q, t):
    a(f'v_permlane16_swap_b32 v{s}, v{q}'); a(f'v_add_f32 v{s}, v{s}, v{q}')
    a(f'v_mov_b32 v{q}, v{s}'); a(f'v_permlane32_swap_b32 v{s}, v{q}'); a(f'v_add_f32 v{s}, v{s}, v{q}')
    a(f'v_mov_b32 v{q}, v{s}'); a(f'v_permlane16_swap_b32 v{s}, v{q}')

def gelu_consts(vc, sc):
    a(f'v_mov_b32 v{vc}, 0xc0135761'); a(f'v_mov_b32 v{vc+1}, 1.0')
    a(f's_mov_b32 s{sc}, 0xbdd2d3e8'); a(f's_mov_b32 s{sc+1}, 0xbdd2d3e8')

def gelu(zs, ts, outs, vc, sc):
    P = lambda r: f'v[{r}:{r+1}]'
    for z, t in zip(zs, ts): a(f'v_pk_mul_f32 {P(t)}, {P(z)}, {P(z)}')
    for z, t in zip(zs, ts): a(f'v_pk_fma_f32 {P(t)}, {P(t)}, s[{sc}:{sc+1}], {P(vc)} op_sel_hi:[1,1,0]')
    for z, t in zip(zs, ts): a(f'v_pk_mul_f32 {P(t)}, {P(t)}, {P(z)}')
    for z, t in zip(zs, ts): a(f'v_exp_f32 v{t}, v{t}'); a(f'v_exp_f32 v{t+1}, v{t+1}')
    for z, t in zip(zs, ts): a(f'v_pk_add_f32 {P(t)}, {P(t)}, {P(vc)} op_sel:[0,1] op_sel_hi:[1,1]')
    for z, t in zip(zs, ts): a(f'v_rcp_f32 v{t}, v{t}'); a(f'v_rcp_f32 v{t+1}, v{t+1}')
    for z, t in zip(zs, ts): a(f'v_pk_mul_f32 {P(t)}, {P(t)}, {P(z)}')
    for t, o in zip(ts, outs): a(f'v_cvt_pk_bf16_f32 v{o}, v{t}, v{t+1}')

def epoch_only():
    wave_flag((FH, 's2'))
    a('v_lshrrev_b32 v1, 1, v0'); a('v_lshlrev_b32 v1, 3, v1'); a('v_and_b32 v2, 1, v0'); a('v_add_u32 v1, v1, v2')
    a(f's_lshl_b32 s{sA}, s{sW}, 1'); a(f'v_add_u32 v1, s{sA}, v1'); a('v_lshlrev_b32 v1, 7, v1')
    a(f's_mov_b32 s{sA}, {FH}')
    poll(1, [sA], 2)
    a('s_barrier'); epoch_write(); a.wait_all()

MF = 'v_mfma_f32_16x16x32_bf16'
def V4(r): return f'v[{r}:{r+3}]'

def g1():
    wave_flag((FH, 's2'))
    a(f's_and_b32 s{sNH}, s{sW}, 1'); a(f's_lshr_b32 s{sKH}, s{sW}, 1'); a(f's_xor_b32 s{sOWN}, s{sNH}, s{sKH}')
    a('v_lshrrev_b32 v1, 1, v0'); a('v_lshlrev_b32 v1, 3, v1'); a('v_and_b32 v2, 1, v0'); a('v_add_u32 v1, v1, v2')
    a(f's_lshl_b32 s{sA}, s{sW}, 1'); a(f'v_add_u32 v1, s{sA}, v1'); a('v_lshlrev_b32 v1, 7, v1')
    a(f's_mov_b32 s{sA}, {FH}')
    ONES = 92; ACC = 8; BR = 48; SA = 88
    def between():
        for k in range(4): a(f'v_mov_b32 v{ONES+k}, 0x3f803f80')
        for s in range(10):
            for jt in range(5):
                c = '0' if s == 0 else V4(ACC + 4*jt)
                a(f'{MF} {V4(ACC+4*jt)}, {Q(5*s+jt)}, {V4(ONES)}, {c}')
        a('v_lshrrev_b32 v3, 4, v0'); a('v_lshrrev_b32 v4, 2, v0'); a('v_and_b32 v4, 3, v4'); a('v_and_b32 v5, 3, v0')
        a('v_and_b32 v6, 1, v3'); a(f'v_xor_b32 v6, s{sOWN}, v6'); a('v_lshlrev_b32 v6, 5, v6'); a('v_lshlrev_b32 v5, 3, v5')
        a('v_add_u32 v5, v5, v6')
        a('v_lshlrev_b32 v6, 2, v3'); a('v_add_u32 v6, v6, v4'); a('v_lshlrev_b32 v6, 6, v6'); a('v_add_u32 v6, v6, v5')
        a(f's_mul_i32 s{sA+1}, s{sKH}, 20480'); a(f'v_add_u32 v6, s{sA+1}, v6'); a('v_xor_b32 v7, 32, v6')
        a('v_mul_u32_u24 v3, 20, v3'); a('v_add_u32 v3, v3, v4'); a('v_lshlrev_b32 v3, 6, v3'); a('v_add_u32 v3, v3, v5')
        a(f's_lshl_b32 s{sA+1}, s{sG}, 1'); a(f's_add_u32 s{sA+1}, s{sA+1}, s{sNH}'); a(f's_mul_i32 s{sA+1}, s{sA+1}, 5120')
        a(f'v_add_u32 v3, s{sA+1}, v3'); a('v_xor_b32 v4, 32, v3')
        a(f's_mul_i32 s{sA+1}, s{sW}, 5120'); a(f's_add_u32 s{sA+1}, s{sA+1}, {RED}'); a(f'v_add_u32 v5, s{sA+1}, v{vL16}')
        a(f's_xor_b32 s{sA+1}, s{sW}, 2'); a(f's_mul_i32 s{sA+1}, s{sA+1}, 5120'); a(f's_add_u32 s{sA+1}, s{sA+1}, {RED}')
        a(f'v_add_u32 v111, s{sA+1}, v{vL16}')
        for jt in range(5): a.ds(f'ds_write_b128 v5, {V4(ACC+4*jt)} offset:{20480 + 1024*jt}')
        a(f'v_lshrrev_b32 v96, 2, v0'); a('v_lshlrev_b32 v96, 7, v96'); a('v_and_b32 v97, 3, v0'); a('v_lshlrev_b32 v97, 4, v97'); a('v_add_u32 v96, v96, v97')
        a(f's_lshr_b32 s{sA+1}, s{sB}, 1'); a(f's_mul_i32 s{sA+1}, s{sA+1}, 81920'); a(f's_and_b32 s{sA+2}, s{sB}, 1'); a(f's_lshl_b32 s{sA+2}, s{sA+2}, 6')
        a(f's_add_u32 s{sA+1}, s{sA+1}, s{sA+2}'); a(f's_mul_i32 s{sA+2}, s{sW}, 20480'); a(f's_add_u32 s{sA+1}, s{sA+1}, s{sA+2}')
        a(f's_add_u32 s{sA+1}, s{sA+1}, {HT}')
        a(f's_mul_i32 s{sA+2}, s{sW}, 10240'); a(f's_mov_b32 m0, s{sA+2}')
        a(f's_lshl_b32 s{sU0}, s{sO}, 2'); a(f's_add_u32 s{sU0}, s{sU0}, s{sW}'); a(f's_mul_i32 s{sU0}, s{sU0}, 61440')
        a(f's_add_u32 s{sU1}, s{sU0}, {W4F}'); a(f's_add_u32 s{sU0}, s{sU0}, {W3F}')
        for k in range(4): a(f'v_mov_b32 v{SA+k}, 0')
    poll(1, [sA], 2, between)
    stamp(7)
    for i in range(10):
        if i:
            if i % 4 == 0: a(f's_add_u32 s{sA+1}, s{sA+1}, 5120'); a('s_add_u32 m0, m0, 4096')
            else: a(f's_add_u32 s{sA+1}, s{sA+1}, 1024')
        a.vm(f'buffer_load_dwordx4 v96, {ws()}, s{sA+1} offen offset:{(i%4)*1024} lds')
    a.wait_all(); a('s_barrier')
    stamp(8)
    tB = {}
    def rdB(s, mu):
        o = BR + 8*(s % 3) + 4*mu
        a.ds(f'ds_read_b64_tr_b16 v[{o}:{o+1}], v{6+mu} offset:{2048*s}')
        tB[s, mu] = a.ds(f'ds_read_b64_tr_b16 v[{o+2}:{o+3}], v{6+mu} offset:{2048*s + 1024}')
    for s in range(2):
        for mu in range(2): rdB(s, mu)
    for jt in range(5): a.ds(f'ds_read_b64_tr_b16 v[{vHR+2*jt}:{vHR+2*jt+1}], v{3+(jt&1)} offset:{256*jt}')
    epoch_write()
    for s in range(10):
        o = BR + 8*(s % 3)
        fill = []
        for k in range(4):
            fill.append(f'v_dot2_f32_bf16 v{SA+(k&1)}, v{o+k}, v{ONES}, v{SA+(k&1)}')
            fill.append(f'v_dot2_f32_bf16 v{SA+2+(k&1)}, v{o+k}, v{o+k}, v{SA+2+(k&1)}')
        for jt in range(5):
            for mu in range(2):
                if jt == 0: a.wait_lg(tB[s, mu])
                r = ACC + 20*mu + 4*jt
                a(f'{MF} {V4(r)}, {Q(5*s+jt)}, {V4(o+4*mu)}, {"0" if s == 0 else V4(r)}')
                if mu == 0:
                    if jt < 2 and s + 2 < 10: rdB(s + 2, jt)
                    else:
                        for _ in range(2):
                            if fill: a(fill.pop(0))
                else:
                    f = 5*s + jt
                    if f and f % 4 == 0: a(f's_add_u32 s{sU0}, s{sU0}, 4096')
                    a.vm(f'buffer_load_dwordx4 {Q(f)}, v{vL16}, {ws()}, s{sU0} offen offset:{(f%4)*1024}')
                    if fill and jt < 2: a(fill.pop(0))
        while fill: a(fill.pop(0))
    stamp(9)
    a(f'v_add_f32 v{SA}, v{SA}, v{SA+1}'); a(f'v_add_f32 v{SA+1}, v{SA+2}, v{SA+3}')
    a('v_lshlrev_b32 v1, 3, v0'); a(f's_lshl_b32 s{sA+1}, s{sW}, 9'); a(f's_add_u32 s{sA+1}, s{sA+1}, {STX}'); a(f'v_add_u32 v2, s{sA+1}, v1')
    a(f's_xor_b32 s{sA+1}, s{sA+1}, {3*512}') ; a(f'v_add_u32 v1, s{sA+1}, v1')
    a.ds(f'ds_write_b64 v2, v[{SA}:{SA+1}]')
    for jt in range(5): a.ds(f'ds_write_b128 v5, {V4(ACC+20+4*jt)} offset:{1024*jt}')
    for jt in range(5): a.ds(f'ds_read_b128 {V4(48+4*jt)}, v5 offset:{20480 + 1024*jt}')
    for jt in range(5): a.ds(f'ds_read_b128 {V4(68+4*jt)}, v111 offset:{20480 + 1024*jt}')
    gelu_consts(96, sA+6)
    barrier()
    ts = a.ds(f'ds_read_b64 v[{SA+2}:{SA+3}], v1')
    tp = [a.ds(f'ds_read_b128 {V4(ACC+20+4*jt)}, v111 offset:{1024*jt}') for jt in range(5)]
    for k in range(0, 20, 2): a(f'v_pk_add_f32 v[{48+k}:{49+k}], v[{48+k}:{49+k}], v[{68+k}:{69+k}]')
    a.wait_lg(ts)
    a(f'v_pk_add_f32 v[{SA}:{SA+1}], v[{SA}:{SA+1}], v[{SA+2}:{SA+3}]')
    S_, Q_ = SA, SA + 1
    qreduce(S_, Q_, None)
    a(f's_mov_b32 s{sA+1}, 0x3acccccd')
    a(f'v_mul_f32 v{S_}, s{sA+1}, v{S_}'); a(f'v_mul_f32 v{Q_}, s{sA+1}, v{Q_}')
    a(f'v_fma_f32 v{Q_}, -v{S_}, v{S_}, v{Q_}'); a(f'v_max_f32 v{Q_}, 0, v{Q_}')
    bf(90, S_); bf(91, Q_); a('v_add_f32 v91, 0x3727c5ac, v91'); bf(91, 91); a('v_sqrt_f32 v91, v91'); bf(91, 91)
    a(f'v_rcp_f32 v{vST}, v91'); a(f'v_sub_f32 v{S_}, v{S_}, v90'); a(f'v_mul_f32 v{S_}, v{S_}, v{vST}'); bf(S_, S_)
    a(f'v_mul_f32 v{Q_}, v{Q_}, v{vST}'); a(f'v_mul_f32 v{Q_}, v{Q_}, v{vST}'); bf(Q_, Q_)
    a(f'v_add_f32 v{Q_}, 0x3727c5ac, v{Q_}'); bf(Q_, Q_); a(f'v_sqrt_f32 v{Q_}, v{Q_}'); bf(Q_, Q_); a(f'v_rcp_f32 v{Q_}, v{Q_}')
    a(f'v_mul_f32_e64 v{vST+1}, -v90, v{vST}')
    a(f'v_fma_f32 v3, -v{S_}, v91, -v90')
    a(f'v_mul_f32 v2, v{Q_}, v{vST}')
    for jt in range(5):
        a.wait_lg(tp[jt])
        for k in range(2):
            r = ACC + 4*jt + 2*k
            a(f'v_pk_add_f32 v[{r}:{r+1}], v[{r}:{r+1}], v[{r+20}:{r+21}]')
    for k in range(0, 20, 2): a(f'v_pk_fma_f32 v[{ACC+k}:{ACC+k+1}], v[{48+k}:{49+k}], v[2:3], v[{ACC+k}:{ACC+k+1}] op_sel:[0,1,0] op_sel_hi:[1,1,1]')
    for k in range(0, 20, 2): a(f'v_pk_mul_f32 v[{ACC+k}:{ACC+k+1}], v[{ACC+k}:{ACC+k+1}], v[2:3] op_sel_hi:[1,0]')
    gelu([ACC + 2*k for k in range(10)], [28 + 2*k for k in range(10)], [48 + k for k in range(10)], 96, sA+6)
    a(f's_lshl_b32 s{sA}, s{sB}, 1'); a(f's_add_u32 s{sA}, s{sA}, s{sOWN}'); a(f's_mul_i32 s{sA}, s{sA}, 20480')
    a(f's_mul_i32 s{sA+1}, s{sG}, 5120'); a(f's_add_u32 s{sA}, s{sA}, s{sA+1}')
    a(f's_mul_i32 s{sA+1}, s{sNH}, 3072'); a(f's_add_u32 s{sA+1}, s{sA+1}, s{sA}')
    a(f's_lshl_b32 s{sA+2}, s{sNH}, 3'); a(f's_add_u32 s{sA+2}, s{sA+2}, s{sA}')
    H = f's[{R_H1}:{R_H1+3}]'
    a.vm(f'buffer_store_dwordx4 v[48:51], v{vL16}, {H}, s{sA+1} offen sc1')
    a.vm(f'buffer_store_dwordx4 v[52:55], v{vL16}, {H}, s{sA+1} offen offset:1024 sc1')
    a.vm(f'buffer_store_dwordx2 v[56:57], v{vL16}, {H}, s{sA+2} offen offset:2048 sc1')
    a.wait_all(); a('s_barrier')
    stamp(10)

def g2():
    wave_flag((F1, f's{sLIN}'))
    ACC = 8; BR = 48
    a(f's_bitcmp1_b32 s{sW}, 0'); a(f's_cselect_b32 s{sA}, 1, -1'); a(f's_add_u32 s{sA}, s{sB}, s{sA}')
    a(f's_cmp_lt_u32 s{sA}, 64'); a(f's_cselect_b32 s{sA}, s{sA}, s{sB}')
    a(f's_lshl_b32 s{sA}, s{sA}, 2'); a(f's_add_u32 s{sA}, s{sA}, s{sW}'); a(f's_lshl_b32 s{sA}, s{sA}, 7'); a(f's_add_u32 s{sA}, s{sA}, {F1}')
    a(f's_lshl_b32 s{sA+1}, s{sB}, 2'); a(f's_add_u32 s{sA+1}, s{sA+1}, s{sW}'); a(f's_lshl_b32 s{sA+1}, s{sA+1}, 7'); a(f's_add_u32 s{sA+1}, s{sA+1}, {F1}')
    a(f's_lshl_b32 s{sA+2}, s{sO}, 2'); a(f's_add_u32 s{sA+2}, s{sA+2}, s{sW}'); a(f's_lshl_b32 s{sA+2}, s{sA+2}, 8'); a(f's_add_u32 s{sA+2}, s{sA+2}, {F4}')
    a('v_and_b32 v2, 1, v0'); a('v_lshlrev_b32 v1, 7, v2'); a(f'v_add_u32 v1, s{sA+2}, v1')
    a(f'v_writelane_b32 v1, s{sA+1}, 0'); a(f'v_writelane_b32 v1, s{sA}, 1')
    a(f's_mov_b32 s{sA}, 0')
    def between():
        a(f's_add_u32 s{sA+1}, s{sKH}, 1'); a(f's_sub_u32 s{sA+2}, 0, s{sA+1}'); a(f's_bitcmp1_b32 s{sW}, 0'); a(f's_cselect_b32 s{sA+1}, s{sA+1}, s{sA+2}')
        a(f's_lshl_b32 s{sA+2}, s{sB}, 5'); a(f's_add_u32 s{sA+1}, s{sA+1}, s{sA+2}')
        a('v_and_b32 v3, 15, v0'); a(f'v_add_u32 v3, s{sA+1}, v3'); a('v_lshrrev_b32 v4, 4, v0'); a('v_lshlrev_b32 v4, 8, v4')
        a('v_mov_b32 v9, 0x80000000')
        for T in range(2):
            if T: a('v_add_u32 v3, 16, v3')
            a('v_lshrrev_b32 v8, 4, v3'); a('v_mul_u32_u24 v8, 20480, v8'); a(f'v_and_b32 v{6+T}, 15, v3'); a(f'v_lshlrev_b32 v{6+T}, 4, v{6+T}')
            a(f'v_add3_u32 v{6+T}, v{6+T}, v8, v4'); a('v_cmp_gt_u32 vcc, 2048, v3'); a(f'v_cndmask_b32 v{6+T}, v9, v{6+T}, vcc')
        a(f's_mul_i32 s{sA+1}, s{sW}, 5120'); a(f's_add_u32 s{sA+2}, s{sA+1}, 4096')
        a(f's_mul_i32 s{sA+6}, s{sOWN}, 20480'); a(f's_mul_i32 s{sA+7}, s{sKH}, 10240'); a(f's_add_u32 s{sA+7}, s{sA+7}, {IMG2}')
        a(f's_add_u32 s{sT}, s{sA+7}, s{sA+6}'); a(f'v_add_u32 v3, s{sT}, v{vL16}')
        a(f's_sub_u32 s{sA+6}, 20480, s{sA+6}'); a(f's_add_u32 s{sT}, s{sA+7}, s{sA+6}'); a(f'v_add_u32 v4, s{sT}, v{vL16}')
    poll(1, [sA], 2, between)
    stamp(11)
    H = f's[{R_H1}:{R_H1+3}]'
    for T in range(2):
        a(f's_add_u32 m0, s{sA+1}, {IMG2 + 20480*T}')
        for sg in range(4): a.vm(f'buffer_load_dwordx4 v{6+T}, {H}, s{sA+1} offen offset:{1024*sg} lds')
        a(f's_add_u32 m0, s{sA+1}, {IMG2 + 20480*T + 4096}')
        a.vm(f'buffer_load_dwordx4 v{6+T}, {H}, s{sA+2} offen lds')
    a.wait_all(); a('s_barrier')
    tB = {}
    def rdB(s, mu):
        o = BR + 8*(s % 3) + 4*mu
        tB[s, mu] = a.ds(f'ds_read_b128 {V4(o)}, v{3+mu} offset:{1024*s}')
    for s in range(2):
        for mu in range(2): rdB(s, mu)
    for s in range(10):
        o = BR + 8*(s % 3)
        for jt in range(5):
            for mu in range(2):
                if jt == 0: a.wait_lg(tB[s, mu])
                r = ACC + 20*mu + 4*jt
                a(f'{MF} {V4(r)}, {Q(50+5*s+jt)}, {V4(o+4*mu)}, {"0" if s == 0 else V4(r)}')
                if mu == 0:
                    if jt < 2 and s + 2 < 10: rdB(s + 2, jt)
                else:
                    if s < 2: f = 50 + 5*s + jt; sr = sU0
                    else: f = 5*(s-2) + jt; sr = sU1
                    if f and f % 4 == 0: a(f's_add_u32 s{sr}, s{sr}, 4096')
                    a.vm(f'buffer_load_dwordx4 {Q(50+5*s+jt)}, v{vL16}, {ws()}, s{sr} offen offset:{(f%4)*1024}')
    for jt in range(5): a.ds(f'ds_write_b128 v5, {V4(ACC+20+4*jt)} offset:{1024*jt}')
    a(f's_mov_b32 s{sA}, 0xffff0000')
    for k in range(10): a(f'v_lshlrev_b32 v{48+2*k}, 16, v{vHR+k}'); a(f'v_and_b32 v{49+2*k}, s{sA}, v{vHR+k}')
    for k in range(10): a(f'v_pk_fma_f32 v[{48+2*k}:{49+2*k}], v[{48+2*k}:{49+2*k}], v[{vST}:{vST+1}], v[{vST}:{vST+1}] op_sel:[0,0,1] op_sel_hi:[1,0,1]')
    barrier()
    tp = [a.ds(f'ds_read_b128 {V4(ACC+20+4*jt)}, v111 offset:{1024*jt}') for jt in range(5)]
    for k in range(10): a(f'v_pk_add_f32 v[{ACC+2*k}:{ACC+2*k+1}], v[{ACC+2*k}:{ACC+2*k+1}], v[{48+2*k}:{49+2*k}]')
    a(f's_lshl_b32 s{sA}, s{sB}, 1'); a(f's_add_u32 s{sA}, s{sA}, s{sOWN}')
    a(f's_lshl_b32 s{sA+6}, s{sA}, 3'); a(f's_lshl_b32 s{sA+7}, s{sG}, 1'); a(f's_add_u32 s{sA+6}, s{sA+6}, s{sA+7}'); a(f's_add_u32 s{sA+6}, s{sA+6}, s{sNH}')
    a(f's_lshl_b32 s{sA+6}, s{sA+6}, 7'); a(f's_add_u32 s{sA+6}, s{sA+6}, {ST}')
    a(f's_mul_i32 s{sA}, s{sA}, 20480'); a(f's_mul_i32 s{sA+1}, s{sG}, 5120'); a(f's_add_u32 s{sA}, s{sA}, s{sA+1}'); a(f's_add_u32 s{sA}, s{sA}, {HRF}')
    a(f's_lshl_b32 s{sA+1}, s{sNH}, 11'); a(f's_add_u32 s{sA+1}, s{sA+1}, s{sA}')
    a(f's_lshl_b32 s{sA+2}, s{sNH}, 3'); a(f's_add_u32 s{sA+2}, s{sA+2}, s{sA}'); a(f's_add_u32 s{sA+2}, s{sA+2}, 4096')
    a.vm(f'buffer_store_dwordx4 {V4(vHR)}, v{vL16}, {ws()}, s{sA+1} offen sc1')
    a.vm(f'buffer_store_dwordx4 {V4(vHR+4)}, v{vL16}, {ws()}, s{sA+1} offen offset:1024 sc1')
    a.vm(f'buffer_store_dwordx2 v[{vHR+8}:{vHR+9}], v{vL16}, {ws()}, s{sA+2} offen sc1')
    a(f's_sub_u32 s{sA+1}, s{sA+1}, {HRF - X1F}'); a(f's_sub_u32 s{sA+2}, s{sA+2}, {HRF - X1F}')
    a('v_mov_b32 v70, 0x3f803f80')
    for k in range(4): a(f'v_mov_b32 v{72+k}, 0')
    for jt in range(5):
        a.wait_lg(tp[jt])
        for k in range(2):
            r = ACC + 4*jt + 2*k
            a(f'v_pk_add_f32 v[{r}:{r+1}], v[{r}:{r+1}], v[{r+20}:{r+21}]')
        for k in range(2): a(f'v_cvt_pk_bf16_f32 v{48+2*jt+k}, v{ACC+4*jt+2*k}, v{ACC+4*jt+2*k+1}')
        if jt == 1: a.vm(f'buffer_store_dwordx4 v[48:51], v{vL16}, {ws()}, s{sA+1} offen sc1')
        if jt == 3: a.vm(f'buffer_store_dwordx4 v[52:55], v{vL16}, {ws()}, s{sA+1} offen offset:1024 sc1')
        if jt == 4: a.vm(f'buffer_store_dwordx2 v[56:57], v{vL16}, {ws()}, s{sA+2} offen sc1')
    for k in range(10):
        a(f'v_dot2_f32_bf16 v{72+(k&1)}, v{48+k}, v70, v{72+(k&1)}'); a(f'v_dot2_f32_bf16 v{74+(k&1)}, v{48+k}, v{48+k}, v{74+(k&1)}')
    a('v_and_b32 v1, 15, v0'); a('v_lshlrev_b32 v1, 3, v1')
    a('v_add_f32 v72, v72, v73'); a('v_add_f32 v73, v74, v75')
    qreduce(72, 73, None)
    a.vm(f'buffer_store_dwordx2 v[72:73], v1, {ws()}, s{sA+6} offen sc1')
    a.wait_all(); a('s_barrier')
    stamp(12)

def g3():
    global a
    wave_flag((F2, f's{sLIN}'))
    ACC = 8; BR = 56; SR = 80; CS = 96
    a('v_and_b32 v1, 1, v0'); a('v_lshlrev_b32 v1, 9, v1')
    a(f's_lshl_b32 s{sA}, s{sRB}, 3'); a(f's_add_u32 s{sA}, s{sA}, s{sW}'); a(f's_lshl_b32 s{sA}, s{sA}, 7'); a(f's_add_u32 s{sA}, s{sA}, {F2}')
    def between():
        for k in range(4): a(f'v_mov_b32 v{BR+k}, 0x3f803f80')
        for s in range(20):
            for jt in range(3):
                a(f'{MF} {V4(CS+4*jt)}, {Q(3*s+jt)}, {V4(BR)}, {"0" if s == 0 else V4(CS+4*jt)}')
        a(f's_mul_i32 s{sA+1}, s{sRB}, 81920'); a(f's_mul_i32 s{sA+2}, s{sW}, 5120'); a(f's_add_u32 s{sA+1}, s{sA+1}, s{sA+2}')
        a(f's_add_u32 s{sA+1}, s{sA+1}, {X1F}')
        a(f'v_add_u32 v3, {IMG3}, v{vL16}'); a(f'v_add_u32 v4, {IMG3 + 40960}, v{vL16}')
        a('v_lshrrev_b32 v5, 4, v0'); a('v_lshlrev_b32 v5, 8, v5'); a('v_and_b32 v6, 15, v0'); a('v_lshlrev_b32 v6, 3, v6'); a('v_add_u32 v5, v5, v6')
        a(f's_lshl_b32 s{sA+6}, s{sRB}, 12'); a(f's_add_u32 s{sA+6}, s{sA+6}, {ST}')
    poll(1, [sA], 2, between)
    for M in range(4):
        a(f's_add_u32 m0, s{sA+2}, {IMG3 + 20480*M}')
        if M: a(f's_add_u32 s{sA+1}, s{sA+1}, {20480 - 4096}')
        for sg in range(4): a.vm(f'buffer_load_dwordx4 v{vL16}, {ws()}, s{sA+1} offen offset:{1024*sg} lds')
        a(f's_add_u32 m0, s{sA+2}, {IMG3 + 20480*M + 4096}'); a(f's_add_u32 s{sA+1}, s{sA+1}, 4096')
        a.vm(f'buffer_load_dwordx4 v{vL16}, {ws()}, s{sA+1} offen lds')
    a.wait_all(); a('s_barrier')
    tS = None
    for M in range(4):
        for k in range(2): tS = a.vm(f'buffer_load_dwordx2 v[{SR+4*M+2*k}:{SR+4*M+2*k+1}], v5, {ws()}, s{sA+6} offen offset:{1024*M + 128*k}')
    tB = {}
    def rdB(n):
        s, M = divmod(n, 4); o = BR + 4*(n % 6)
        tB[n] = a.ds(f'ds_read_b128 {V4(o)}, v{3+(M>>1)} offset:{20480*(M&1) + 1024*s}')
    for n in range(5): rdB(n)
    class Rec:
        def __init__(s): s.l = []
        def __call__(s, t): s.l.append(t)
    real = a; rec = Rec(); a = rec
    for M in range(4):
        s_, q_ = SR + 4*M, SR + 4*M + 1
        a(f'v_pk_add_f32 v[{s_}:{q_}], v[{s_}:{q_}], v[{s_+2}:{s_+3}]')
        qreduce(s_, q_, None)
        a(f'v_mul_f32 v{s_}, s{sA+1}, v{s_}'); a(f'v_mul_f32 v{q_}, s{sA+1}, v{q_}')
        a(f'v_fma_f32 v{q_}, -v{s_}, v{s_}, v{q_}'); a(f'v_max_f32 v{q_}, 0, v{q_}')
        a(f'v_cvt_pk_bf16_f32 v{s_}, v{s_}, v{q_}'); a(f'v_and_b32 v{q_}, 0xffff0000, v{s_}'); a(f'v_lshlrev_b32 v{s_}, 16, v{s_}')
        a(f'v_add_f32 v{q_}, 0x3727c5ac, v{q_}')
        a(f'v_cvt_pk_bf16_f32 v{q_}, v{q_}, v{q_}'); a(f'v_lshlrev_b32 v{q_}, 16, v{q_}'); a(f'v_sqrt_f32 v{q_}, v{q_}')
        a(f'v_cvt_pk_bf16_f32 v{q_}, v{q_}, v{q_}'); a(f'v_lshlrev_b32 v{q_}, 16, v{q_}'); a(f'v_rcp_f32 v{q_}, v{q_}')
    a = real; fill = rec.l
    a(f's_mov_b32 s{sA+1}, 0x3acccccd')
    for n in range(80):
        s, M = divmod(n, 4); o = BR + 4*(n % 6)
        if n == 16: a.wait_vm(tS)
        for jt in range(3):
            if jt == 0: a.wait_lg(tB[n])
            r = ACC + 12*M + 4*jt
            a(f'{MF} {V4(r)}, {Q(3*s+jt)}, {V4(o)}, {"0" if s == 0 else V4(r)}')
            if jt == 0 and n + 5 < 80: rdB(n + 5)
            f = 3*s + jt
            if M == 3 and f < 20:
                if f % 4 == 0: a(f's_add_u32 s{sU1}, s{sU1}, 4096')
                a.vm(f'buffer_load_dwordx4 {Q(f)}, v{vL16}, {ws()}, s{sU1} offen offset:{(f%4)*1024}')
            elif n >= 16 and jt > 0 and fill: a(fill.pop(0))
    assert not fill
    gelu_consts(108, sA+6)
    a(f's_mul_i32 s{sA}, s{sRB}, 196608'); a(f's_mul_i32 s{sA+1}, s{sO}, 24576'); a(f's_add_u32 s{sA}, s{sA}, s{sA+1}')
    a(f's_mul_i32 s{sA+1}, s{sKH}, 12288'); a(f's_add_u32 s{sA}, s{sA}, s{sA+1}'); a(f's_add_u32 s{sA}, s{sA}, {HF}')
    a(f's_lshl_b32 s{sA+1}, s{sNH}, 12'); a(f's_add_u32 s{sA+1}, s{sA+1}, s{sA}')
    a(f's_lshl_b32 s{sA+2}, s{sNH}, 3'); a(f's_add_u32 s{sA+2}, s{sA+2}, s{sA}'); a(f's_add_u32 s{sA+2}, s{sA+2}, 8192')
    for Mp in range(2):
        zs = []
        for M in (2*Mp, 2*Mp + 1):
            p = f'v[{SR+4*M}:{SR+4*M+1}]'
            for k in range(6):
                r = ACC + 12*M + 2*k; zs.append(r)
                a(f'v_pk_fma_f32 v[{r}:{r+1}], v[{CS+2*k}:{CS+2*k+1}], {p}, v[{r}:{r+1}] op_sel_hi:[1,0,1] neg_lo:[0,1,0] neg_hi:[0,1,0]')
            for k in range(6):
                r = ACC + 12*M + 2*k
                a(f'v_pk_mul_f32 v[{r}:{r+1}], v[{r}:{r+1}], {p} op_sel:[0,1] op_sel_hi:[1,1]')
        ts = [BR + 2*k for k in range(12)]
        outs = [ACC + 24*Mp + 6*(k//6) + (k % 6) for k in range(12)]
        gelu(zs, ts, outs, 108, sA+6)
        for i, M in enumerate((2*Mp, 2*Mp + 1)):
            o = ACC + 24*Mp + 6*i
            a.vm(f'buffer_store_dwordx4 {V4(o)}, v{vL16}, {ws()}, s{sA+1} offen offset:{1024*M} sc1')
            a.vm(f'buffer_store_dwordx2 v[{o+4}:{o+5}], v{vL16}, {ws()}, s{sA+2} offen offset:{1024*M} sc1')
    a.wait_all(); a('s_barrier')
    stamp(13)

def g4():
    wave_flag((F3, f's{sLIN}'))
    ACC = 8; BR = 28; XR = 80; HR = 90
    a(f's_lshl_b32 s{sA}, s{sRB}, 2'); a(f's_add_u32 s{sA}, s{sA}, s{sW}'); a(f's_mul_i32 s{sA}, s{sA}, 20480')
    a(f's_lshr_b32 s{sA+1}, s{sO}, 1'); a(f's_mul_i32 s{sA+1}, s{sA+1}, 5120'); a(f's_add_u32 s{sA}, s{sA}, s{sA+1}'); a(f's_add_u32 s{sA}, s{sA}, {X1F}')
    a(f's_and_b32 s{sA+2}, s{sO}, 1'); a(f's_lshl_b32 s{sA+1}, s{sA+2}, 11'); a(f's_add_u32 s{sA+1}, s{sA+1}, s{sA}')
    a(f's_lshl_b32 s{sA+2}, s{sA+2}, 3'); a(f's_add_u32 s{sA+2}, s{sA+2}, s{sA}'); a(f's_add_u32 s{sA+2}, s{sA+2}, 4096')
    for R in (XR, HR):
        a.vm(f'buffer_load_dwordx4 {V4(R)}, v{vL16}, {ws()}, s{sA+1} offen')
        a.vm(f'buffer_load_dwordx4 {V4(R+4)}, v{vL16}, {ws()}, s{sA+1} offen offset:1024')
        a.vm(f'buffer_load_dwordx2 v[{R+8}:{R+9}], v{vL16}, {ws()}, s{sA+2} offen')
        if R == XR: a(f's_add_u32 s{sA+1}, s{sA+1}, {HRF - X1F}'); a(f's_add_u32 s{sA+2}, s{sA+2}, {HRF - X1F}')
    a('v_and_b32 v1, 1, v0'); a('v_lshlrev_b32 v1, 7, v1')
    a(f's_lshl_b32 s{sA}, s{sRB}, 2'); a(f's_add_u32 s{sA}, s{sA}, s{sW}'); a(f's_lshl_b32 s{sA}, s{sA}, 8'); a(f's_add_u32 s{sA}, s{sA}, {F3}')
    def between():
        a(f's_mul_i32 s{sA+1}, s{sRB}, 196608'); a(f's_mul_i32 s{sA+2}, s{sW}, 49152'); a(f's_add_u32 s{sA+1}, s{sA+1}, s{sA+2}'); a(f's_add_u32 s{sA+1}, s{sA+1}, {HF}')
        a(f's_mul_i32 s{sA+2}, s{sW}, 40960')
        for mu in range(4):
            a(f's_add_u32 s{sA+6}, s{sW}, {mu}'); a(f's_and_b32 s{sA+6}, s{sA+6}, 3'); a(f's_lshl_b32 s{sA+6}, s{sA+6}, 10'); a(f's_add_u32 s{sA+6}, s{sA+6}, s{sA+2}')
            a(f'v_add_u32 v{4+mu}, s{sA+6}, v{vL16}')
        a(f'v_add_u32 v3, s{sA+2}, v{vL16}')
        for mu in range(1, 4):
            a(f's_sub_u32 s{sA+6}, s{sW}, {mu}'); a(f's_and_b32 s{sA+6}, s{sA+6}, 3'); a(f's_mul_i32 s{sA+6}, s{sA+6}, 40960')
            a(f's_add_u32 s{sA+6}, s{sA+6}, {5120*(mu-1)}'); a(f'v_add_u32 v{100+mu}, s{sA+6}, v{vL16}')
        a('v_and_b32 v104, 15, v0'); a('v_mul_u32_u24 v104, 1280, v104'); a('v_lshrrev_b32 v105, 4, v0'); a('v_mul_u32_u24 v105, 40, v105'); a('v_add_u32 v104, v104, v105')
        a(f's_lshl_b32 s{sA+6}, s{sRB}, 2'); a(f's_add_u32 s{sA+6}, s{sA+6}, s{sW}'); a(f's_mul_i32 s{sA+6}, s{sA+6}, 20480')
        a(f's_mul_i32 s{sA+7}, s{sO}, 160'); a(f's_add_u32 s{sA+7}, s{sA+7}, s{sA+6}')
    poll(1, [sA], 2, between)
    tD = {}
    def dma(s):
        a(f's_add_u32 m0, s{sA+2}, {4096*(s % 10)}')
        if s: a(f's_add_u32 s{sA+1}, s{sA+1}, 4096')
        for k in range(4): tD[s] = a.vm(f'buffer_load_dwordx4 v{vL16}, {ws()}, s{sA+1} offen offset:{1024*k} lds')
    for s in range(10): dma(s)
    tB = {}
    def rdB(n):
        s, mu = divmod(n, 4); o = BR + 4*(n % 8)
        if mu == 0: a.wait_vm(tD[s])
        tB[n] = a.ds(f'ds_read_b128 {V4(o)}, v{4+mu} offset:{4096*(s % 10)}')
    for n in range(4): rdB(n)
    def accr(mu, jt): return V4(ACC + 4*jt) if mu == 0 else Q(20 + 5*(mu-1) + jt)
    for n in range(48):
        s, mu = divmod(n, 4); o = BR + 4*(n % 8)
        for jt in range(5):
            if jt == 0: a.wait_lg(tB[n])
            f = 5*s + jt
            a(f'{MF} {accr(mu, jt)}, {Q(60+f) if f < 40 else Q(f-40)}, {V4(o)}, {"0" if s == 0 else accr(mu, jt)}')
            if jt == 0 and n + 4 < 48: rdB(n + 4)
            if jt == 2 and mu == 3 and s < 2: dma(10 + s)
    for mu in range(1, 4):
        for jt in range(5): a.ds(f'ds_write_b128 v3, {accr(mu, jt)} offset:{5120*(mu-1) + 1024*jt}')
    a(f's_mov_b32 s{sA}, 0xffff0000')
    barrier()
    tp = {}
    P = {1: 28, 2: 48, 3: 112}
    for jt in range(5):
        for mu in range(1, 4): tp[jt] = a.ds(f'ds_read_b128 {V4(P[mu]+4*jt)}, v{100+mu} offset:{1024*jt}')
    RS = 132; RT = 152
    for k in range(10):
        a(f'v_lshlrev_b32 v{RS+2*k}, 16, v{XR+k}'); a(f'v_and_b32 v{RS+2*k+1}, s{sA}, v{XR+k}')
        a(f'v_lshlrev_b32 v{RT+2*k}, 16, v{HR+k}'); a(f'v_and_b32 v{RT+2*k+1}, s{sA}, v{HR+k}')
    for k in range(10): a(f'v_pk_add_f32 v[{ACC+2*k}:{ACC+2*k+1}], v[{ACC+2*k}:{ACC+2*k+1}], v[{RS+2*k}:{RS+2*k+1}]')
    O = f's[{R_OUT}:{R_OUT+3}]'
    for jt in range(5):
        a.wait_lg(tp[jt])
        for k in range(2):
            r = 4*jt + 2*k
            a(f'v_pk_add_f32 v[{P[1]+r}:{P[1]+r+1}], v[{P[1]+r}:{P[1]+r+1}], v[{P[2]+r}:{P[2]+r+1}]')
            a(f'v_pk_add_f32 v[{ACC+r}:{ACC+r+1}], v[{ACC+r}:{ACC+r+1}], v[{P[3]+r}:{P[3]+r+1}]')
        for k in range(2):
            r = 4*jt + 2*k
            a(f'v_pk_add_f32 v[{ACC+r}:{ACC+r+1}], v[{ACC+r}:{ACC+r+1}], v[{P[1]+r}:{P[1]+r+1}]')
        for k in range(2):
            r = 4*jt + 2*k
            a(f'v_pk_add_f32 v[{ACC+r}:{ACC+r+1}], v[{ACC+r}:{ACC+r+1}], v[{RT+r}:{RT+r+1}]')
        for k in range(2): a(f'v_cvt_pk_bf16_f32 v{68+2*jt+k}, v{ACC+4*jt+2*k}, v{ACC+4*jt+2*k+1}')
        if jt == 1: a.vm(f'buffer_store_dwordx4 v[68:71], v104, {O}, s{sA+7} offen')
        if jt == 3: a.vm(f'buffer_store_dwordx4 v[72:75], v104, {O}, s{sA+7} offen offset:16')
        if jt == 4: a.vm(f'buffer_store_dwordx2 v[76:77], v104, {O}, s{sA+7} offen offset:32')
    a.wait_all()
    stamp(14)
```

```python
import sys, os
sys.path.insert(0, os.path.dirname(os.path.abspath(__file__)))
from asmlib import *

NAME = 'sequential_preLN__ssm_conv_s4d__mixer_s_mlp__prompt'
OPT = dict(stop=99, ts=0)
for arg in sys.argv[2:]:
    k, v = arg.split('='); OPT[k] = int(v)

FA = 0x1000; FW = 0x9000; F4 = 0xD000; FH = 0x10000; F1 = 0x18000; F2 = 0x20000; F3 = 0x28000
TS = 0x30000
ACT = 0x280000
UT = 0x40000; WT = UT + ACT; HT = WT + ACT; H1F = HT + ACT; X1F = H1F + ACT; HRF = X1F + ACT
ST = HRF + ACT; HF = ST + 0x20000; W1F = HF + 0x600000; W2F = W1F + 0xC8000; W3F = W2F + 0xC8000
W4F = W3F + 0x1E0000; WS_END = W4F + 0x1E0000
FB = 41600; FROW = 784
LS = 124800
LSTAT = LS + 10240 - 0
URB = 135040; URS = 8768
KCS = [0, 61952, 83200]
CPS = 4160
TABO = 4 * CPS
STG4 = 21248
STGO = 83200
IMG1 = 0; IMG2 = 40960; IMG3 = 81920
RED = 81920; CSX = RED + 20480; STX = CSX + 20480
sTAG = 3; sX = 4; sJ = 5; sW = 6; sT = 7
R_WS = 8; R_H1 = 12; R_OUT = 16; R_A = 20; R_B = 24; R_C = 28; R_D = 32
sD0 = 36; sNCH = 37; sLIN = 38; sCNT = 39
sA = 40
sTS = 48
P_X, P_LA, P_AI, P_CR, P_CI, P_DT, P_DS, P_BX, P_W1, P_W2, P_W3, P_W4, P_OUT, P_DBG, P_WS = range(64, 94, 2)
sB = 94; sG = 95; sRB = 96; sO = 97; sYSC = 98; sKC = 99; sU0 = 100; sU1 = 101

a = Asm()

def srd(r, p, size, off=0):
    if off:
        a(f's_add_u32 s{r}, s{p}, {off}'); a(f's_addc_u32 s{r+1}, s{p+1}, 0')
    else:
        a(f's_mov_b32 s{r}, s{p}'); a(f's_mov_b32 s{r+1}, s{p+1}')
    a(f's_mov_b32 s{r+2}, {size}'); a(f's_mov_b32 s{r+3}, 0x00020000')

def Q(i):
    return f'a[{4*i}:{4*i+3}]' if i < 64 else f'v[{112+4*(i-64)}:{112+4*(i-64)+3}]'

def stamp(k):
    if not OPT['ts']: return
    a('s_memtime vcc'); a.wait_all_lg(); a(f's_mov_b32 s{sTS+k}, vcc_lo')

def bf(d, s):
    a(f'v_cvt_pk_bf16_f32 v{d}, v{s}, v{s}'); a(f'v_lshlrev_b32 v{d}, 16, v{d}')

def set_flag(soff_sgpr, vtmp):
    a(f'v_mov_b32 v{vtmp}, s{sTAG}'); a(f'v_mov_b32 v{vtmp+1}, 0')
    a('s_mov_b64 exec, 1')
    a(f'buffer_store_dword v{vtmp}, v{vtmp+1}, s[{R_WS}:{R_WS+3}], s{soff_sgpr} offen sc1')
    a('s_mov_b64 exec, -1')

def poll(voff, soffs, vt, between=None):
    L = a.newlabel('poll'); D = a.newlabel('polld')
    a(f's_mov_b32 s{sCNT}, 0x20000')
    def issue():
        for i, so in enumerate(soffs):
            t = a.vm(f'buffer_load_dword v{vt+i}, v{voff}, s[{R_WS}:{R_WS+3}], s{so} offen sc1')
        return t
    if between is not None:
        issue(); between()
        E = a.newlabel('polle'); a(f's_branch {E}')
    a.label(L)
    a(f's_sub_u32 s{sCNT}, s{sCNT}, 1'); a('s_cbranch_scc1 END')
    issue()
    if between is not None: a.label(E)
    a.wait_all_vm()
    for i in range(len(soffs)): a(f'v_xor_b32 v{vt+i}, s{sTAG}, v{vt+i}')
    for i in range(1, len(soffs)): a(f'v_or_b32 v{vt}, v{vt}, v{vt+i}')
    a(f'v_cmp_ne_u32 vcc, 0, v{vt}')
    a('s_nop 1')
    a(f's_cbranch_vccnz {L}')

def barrier():
    a.wait_all_lg(); a('s_barrier')

def cmul(d, x, e):
    a(f'v_pk_mul_f32 v[{d}:{d+1}], v[{x}:{x+1}], v[{e}:{e+1}] op_sel_hi:[1,0]') if d != x else None
    return

def prologue():
    a('s_cmp_ge_u32 s2, 256'); a('s_cbranch_scc1 END')
    a('s_load_dwordx16 s[64:79], s[0:1], 0'); a('s_load_dwordx8 s[80:87], s[0:1], 64')
    a('s_load_dwordx4 s[88:91], s[0:1], 96'); a('s_load_dwordx2 s[92:93], s[0:1], 112')
    a('v_lshrrev_b32 v1, 6, v0'); a('v_and_b32 v0, 63, v0')
    a(f's_and_b32 s{sX}, s2, 7'); a(f's_lshr_b32 s{sJ}, s2, 3')
    a(f'v_readfirstlane_b32 s{sW}, v1')
    a(f's_mul_i32 s{sD0}, s{sX}, 80'); a(f's_lshr_b32 s{sT}, s{sJ}, 1'); a(f's_mul_i32 s{sT}, s{sT}, 5')
    a(f's_add_u32 s{sD0}, s{sD0}, s{sT}'); a(f's_and_b32 s{sT}, s{sJ}, 1'); a(f's_sub_u32 s{sNCH}, 3, s{sT}')
    a(f's_mul_i32 s{sT}, s{sT}, 3'); a(f's_add_u32 s{sD0}, s{sD0}, s{sT}')
    a(f's_lshl_b32 s{sLIN}, s{sX}, 5'); a(f's_add_u32 s{sLIN}, s{sLIN}, s{sJ}')
    a(f's_lshr_b32 s{sB}, s{sLIN}, 2'); a(f's_and_b32 s{sG}, s{sLIN}, 3')
    a(f's_lshr_b32 s{sRB}, s{sLIN}, 3'); a(f's_and_b32 s{sO}, s{sLIN}, 7')
    a.wait_all_lg()
    a(f's_load_dword s{sTAG}, s[{P_WS}:{P_WS+1}], 0')
    srd(R_WS, P_WS, WS_END); srd(R_H1, P_WS, ACT, H1F); srd(R_OUT, P_OUT, ACT)
    if OPT['ts']:
        for k in range(16): a(f's_mov_b32 s{sTS+k}, 0')
        a('s_memrealtime vcc'); a.wait_all_lg(); a(f's_mov_b32 s{sTS+15}, vcc_lo')
        stamp(0)

def tag_ready():
    a.wait_all_lg()
    a(f's_mul_i32 s{sTAG}, s{sTAG}, 1664525'); a(f's_add_u32 s{sTAG}, s{sTAG}, 1013904223')

def ln0():
    srd(R_A, P_X, ACT); srd(R_B, P_DS, 1280)
    a('v_lshlrev_b32 v1, 4, v0')
    a(f's_mul_i32 s{sA}, s2, 10240')
    for i in range(10):
        if i % 4 == 0:
            a(f's_mov_b32 m0, {LS + i*1024}')
            if i: a(f's_add_u32 s{sA}, s{sA}, 4096')
            else: a('s_nop 0')
        tX = a.vm(f'buffer_load_dwordx4 v1, s[{R_A}:{R_A+3}], s{sA} offen offset:{(i%4)*1024} lds')
    a('v_lshlrev_b32 v2, 1, v0')
    for c in range(10): a(f'v_mov_b32 v{10+c}, 0')
    for c in range(10): tD = a.vm(f'buffer_load_short_d16_hi v{10+c}, v2, s[{R_B}:{R_B+3}], 0 offen offset:{128*c}')
    tag_ready()
    a('v_mov_b32 v4, 0'); a('v_mov_b32 v5, 0'); a('v_lshlrev_b32 v3, 3, v0')
    a(f'v_add_u32 v3, {URB + 4096}, v3')
    for ch in range(3): a.ds(f'ds_write_b64 v3, v[4:5] offset:{ch*URS}')
    a('v_lshrrev_b32 v4, 3, v0'); a('v_mul_u32_u24 v4, 1280, v4'); a('v_and_b32 v5, 7, v0')
    a('v_lshlrev_b32 v5, 4, v5')
    a('v_add_u32 v4, v4, v5'); a(f'v_add_u32 v4, {LS}, v4')
    a('v_lshrrev_b32 v5, 2, v0'); a('v_and_b32 v5, 3, v5'); a('v_mul_u32_u24 v5, 1280, v5')
    a('v_lshrrev_b32 v6, 4, v0'); a('v_lshlrev_b32 v6, 5, v6'); a('v_add_u32 v5, v5, v6')
    a('v_and_b32 v6, 3, v0'); a('v_lshlrev_b32 v6, 3, v6'); a('v_add_u32 v5, v5, v6'); a(f'v_add_u32 v5, {LS}, v5')
    a(f's_mov_b32 s{sA+1}, 0x3f803f80')
    a.wait_vm(tX)
    toks = [a.ds(f'ds_read_b128 v[{20+4*i}:{23+4*i}], v4 offset:{128*i}') for i in range(10)]
    ttr = []
    for c in range(10):
        a.ds(f'ds_read_b64_tr_b16 v[{60+4*c}:{61+4*c}], v5 offset:{128*c}')
        ttr.append(a.ds(f'ds_read_b64_tr_b16 v[{62+4*c}:{63+4*c}], v5 offset:{128*c + 5120}'))
        if c == 2: break
    for k in range(4): a(f'v_mov_b32 v{6+k}, 0')
    for i in range(10):
        a.wait_lg(toks[i])
        for k in range(4):
            r = 20 + 4*i + k
            a(f'v_dot2_f32_bf16 v{6+(k&1)}, v{r}, s{sA+1}, v{6+(k&1)}')
            a(f'v_dot2_f32_bf16 v{8+(k&1)}, v{r}, v{r}, v{8+(k&1)}')
        if 3 + i < 10:
            c = 3 + i
            a.ds(f'ds_read_b64_tr_b16 v[{60+4*c}:{61+4*c}], v5 offset:{128*c}')
            ttr.append(a.ds(f'ds_read_b64_tr_b16 v[{62+4*c}:{63+4*c}], v5 offset:{128*c + 5120}'))
    a('v_add_f32 v6, v6, v7'); a('v_add_f32 v8, v8, v9')
    for m in ('quad_perm:[1,0,3,2]', 'quad_perm:[2,3,0,1]', 'row_half_mirror'):
        a(f'v_add_f32_dpp v6, v6, v6 {m} row_mask:0xf bank_mask:0xf'); a(f'v_add_f32_dpp v8, v8, v8 {m} row_mask:0xf bank_mask:0xf')
    a(f's_mov_b32 s{sA+2}, 0x3acccccd')
    a(f'v_mul_f32 v6, s{sA+2}, v6'); a(f'v_mul_f32 v8, s{sA+2}, v8')
    a('v_fma_f32 v8, -v6, v6, v8'); a('v_max_f32 v8, 0, v8')
    bf(6, 6); bf(8, 8); a('v_add_f32 v8, 0x3727c5ac, v8'); bf(8, 8); a('v_sqrt_f32 v8, v8'); bf(8, 8)
    a('v_rcp_f32 v8, v8'); a('v_mul_f32 v6, v6, v8'); a('v_sub_f32 v6, 0, v6')
    SB = URB + 4608
    a('v_lshrrev_b32 v7, 3, v0'); a('v_lshlrev_b32 v7, 2, v7'); a(f'v_add_u32 v7, {SB}, v7')
    a.ds('ds_write_b32 v7, v8'); a.ds('ds_write_b32 v7, v6 offset:32')
    a(f'v_mov_b32 v7, {SB}')
    for k in range(4): t = a.ds(f'ds_read_b128 v[{20+4*k}:{23+4*k}], v7 offset:{16*k}')
    a(f's_mul_i32 s{sA}, s2, 10240'); a(f's_add_u32 s{sA+2}, s{sA}, {UT}'); a(f's_add_u32 s{sA+3}, s{sA}, {WT}')
    a(f's_mov_b32 s{sA+4}, 0xffff0000')
    a.wait_vm(tD); a.wait_lg(t)
    for c in range(10):
        X = 60 + 4*c; F = 36 + 8*(c & 1) ; U = 100 + 8*(c & 1); O = 116 + 8*c
        for k in range(4):
            a(f'v_lshlrev_b32 v{F+2*k}, 16, v{X+k}'); a(f'v_and_b32 v{F+2*k+1}, s{sA+4}, v{X+k}')
        for k in range(4):
            a(f'v_pk_fma_f32 v[{U+2*k}:{U+2*k+1}], v[{F+2*k}:{F+2*k+1}], v[{20+2*k}:{21+2*k}], v[{28+2*k}:{29+2*k}]')
        dp = 10 + (c & ~1); sel = c & 1
        for k in range(4):
            a(f'v_pk_fma_f32 v[{F+2*k}:{F+2*k+1}], v[{U+2*k}:{U+2*k+1}], v[{dp}:{dp+1}], v[{F+2*k}:{F+2*k+1}] op_sel:[0,{sel},0] op_sel_hi:[1,{sel},1]')
        for k in range(4): a(f'v_cvt_pk_f16_f32 v{O+k}, v{U+7-2*k}, v{U+6-2*k}')
        for k in range(4): a(f'v_cvt_pk_bf16_f32 v{O+4+k}, v{F+2*k}, v{F+2*k+1}')
        if c and c % 4 == 0: a(f's_add_u32 s{sA+2}, s{sA+2}, 4096'); a(f's_add_u32 s{sA+3}, s{sA+3}, 4096')
        a.vm(f'buffer_store_dwordx4 v[{O}:{O+3}], v1, s[{R_WS}:{R_WS+3}], s{sA+2} offen offset:{(c%4)*1024} sc1')
        a.vm(f'buffer_store_dwordx4 v[{O+4}:{O+7}], v1, s[{R_WS}:{R_WS+3}], s{sA+3} offen offset:{(c%4)*1024} sc1')
    a('v_lshrrev_b32 v2, 2, v0'); a('v_and_b32 v3, 3, v0')
    a('v_mul_u32_u24 v4, 10240, v2'); a(f'v_add_u32 v5, s{sD0}, v3'); a('v_lshlrev_b32 v5, 4, v5'); a('v_add_u32 v4, v4, v5')
    a(f'v_mul_u32_u24 v5, {URS}, v3'); a('v_lshlrev_b32 v2, 4, v2')
    a(f'v_add_u32 v6, {URB + 4608}, v5'); a('v_add_u32 v6, v6, v2')
    a(f'v_add_u32 v5, {URB + 4080 - 256*15}, v5'); a('v_sub_u32 v5, v5, v2')
    a(f'v_cmp_gt_u32 s[{sU0}:{sU1}], s{sNCH}, v3')
    a('v_lshlrev_b32 v7, 7, v0')
    a(f's_lshl_b32 s{sA}, s2, 7'); a(f's_add_u32 s{sA}, s{sA}, {FA}')
    stamp(1)
    a.wait_all_vm()
    set_flag(sA, 8)
    for k in range(4): a(f's_mov_b32 s{sA+k}, {FA + 8192*k}')
    for k in range(2): a(f's_mov_b32 s{sA+4+k}, {FW + 8192*k}')
    stamp(2)
    poll(7, [sA+k for k in range(6)], 10)
    stamp(3)
    a(f's_mov_b64 exec, s[{sU0}:{sU1}]')
    a(f's_mov_b32 s{sA}, {UT}'); a(f's_mov_b32 s{sA+1}, {WT}')
    tu = []; tw = []
    for i in range(16):
        tu.append(a.vm(f'buffer_load_dwordx4 v[{20+4*i}:{23+4*i}], v4, s[{R_WS}:{R_WS+3}], s{sA} offen'))
        if i < 15: a(f's_add_u32 s{sA}, s{sA}, 163840')
    for i in range(16):
        tw.append(a.vm(f'buffer_load_dwordx4 v[{84+4*i}:{87+4*i}], v4, s[{R_WS}:{R_WS+3}], s{sA+1} offen'))
        if i < 15: a(f's_add_u32 s{sA+1}, s{sA+1}, 163840')
    for i in range(16):
        a.wait_vm(tu[i]); a.ds(f'ds_write_b128 v5, v[{20+4*i}:{23+4*i}] offset:{256*(15-i)}')
    for i in range(16):
        a.wait_vm(tw[i]); a.ds(f'ds_write_b128 v6, v[{84+4*i}:{87+4*i}] offset:{256*i}')
    a('s_mov_b64 exec, -1')

def prepass(kind):
    sV = sA + 5
    stg = STG4 if kind == 'w4' else STGO
    gpr, rowb, gstride = (6, 96, 3072) if kind == 'w3' else (10, 160, 1280)
    npat = 3 if kind == 'w3' else 5
    ngrp = {'w12': 5, 'w3': 10, 'w4': 6}[kind]
    mul, sh = (171, 10) if kind == 'w3' else (205, 11)
    for i in range(npat):
        a(f'v_add_u32 v2, {64*i}, v0'); a(f'v_mul_u32_u24 v3, {mul}, v2'); a(f'v_lshrrev_b32 v3, {sh}, v3')
        a(f'v_mul_u32_u24 v4, {gpr}, v3'); a('v_sub_u32 v4, v2, v4'); a('v_lshlrev_b32 v4, 4, v4')
        a(f'v_mul_u32_u24 v3, {gstride}, v3'); a(f'v_add_u32 v{10+i}, v3, v4')
    a(f's_lshr_b32 s{sA}, s{sV}, 3'); a(f's_lshr_b32 s{sA+1}, s{sV}, 1'); a(f's_and_b32 s{sA+1}, s{sA+1}, 3'); a(f's_and_b32 s{sA+2}, s{sV}, 1')
    if kind == 'w12':
        a(f's_lshr_b32 s{sA+3}, s{sA+1}, 1'); a(f's_lshl_b32 s{sA+3}, s{sA+3}, 1'); a(f's_add_u32 s{sA+3}, s{sA+3}, s{sA+2}')
        a(f's_mul_i32 s{sA+3}, s{sA+3}, {160*1280}')
        a(f's_and_b32 s{sA+1}, s{sA+1}, 1')
        a(f's_lshl_b32 s{sA}, s{sA}, 1'); a(f's_add_u32 s{sA}, s{sA}, s{sA+1}'); a(f's_mul_i32 s{sA}, s{sA}, 160')
        a(f's_add_u32 s{sA}, s{sA}, s{sA+3}')
    elif kind == 'w3':
        a(f's_lshl_b32 s{sA}, s{sA}, 2'); a(f's_add_u32 s{sA}, s{sA}, s{sA+1}'); a(f's_mul_i32 s{sA}, s{sA}, 96')
        a(f's_mul_i32 s{sA+3}, s{sA+2}, {320*3072}'); a(f's_add_u32 s{sA}, s{sA}, s{sA+3}')
    else:
        a(f's_mul_i32 s{sA}, s{sA}, 160'); a(f's_and_b32 s{sA+3}, s{sV}, 7'); a(f's_mul_i32 s{sA+3}, s{sA+3}, {192*1280}')
        a(f's_add_u32 s{sA}, s{sA}, s{sA+3}')
    tg = []
    for k in range(ngrp):
        for i in range(npat):
            a(f's_mov_b32 m0, {stg + (k*npat + i)*1024}')
            if i == 0 and k: a(f's_add_u32 s{sA}, s{sA}, {32*gstride}')
            else: a('s_nop 0')
            t = a.vm(f'buffer_load_dwordx4 v{10+i}, s[{R_A}:{R_A+3}], s{sA} offen lds')
        tg.append(t)
    a('v_lshrrev_b32 v2, 4, v0'); a('v_lshrrev_b32 v3, 2, v0'); a('v_and_b32 v3, 3, v3'); a('v_and_b32 v4, 3, v0')
    if kind == 'w3':
        a('v_mul_u32_u24 v2, 20, v2'); a('v_add_u32 v2, v2, v3'); a('v_mul_u32_u24 v2, 96, v2'); a('v_lshlrev_b32 v4, 3, v4')
        a('v_add_u32 v2, v2, v4'); a(f'v_add_u32 v20, {stg}, v2')
        steps = []
        for s in range(10):
            g2, sg = divmod(s, 5); r1, r2 = [(0, 4), (8, 12), (80, 84), (88, 92), (16, 96)][sg]
            steps.append(((160*g2 + r1)*96, (160*g2 + r2)*96, 4 if g2 == 0 else 9))
        nj = 3; addr = lambda jt: (20, 32*jt)
    else:
        a('v_lshlrev_b32 v2, 2, v2'); a('v_add_u32 v2, v2, v3'); a('v_mul_u32_u24 v2, 160, v2'); a(f'v_add_u32 v2, {stg}, v2')
        a('v_mul_u32_u24 v3, 40, v4'); a('v_add_u32 v3, v2, v3')
        for jt in range(5): a(f'v_add_u32 v{20+jt}, {8*jt}, v3')
        if kind == 'w12':
            L = a.newlabel('w1map')
            a(f's_cmp_lg_u32 s{sA+6}, 0'); a(f's_cbranch_scc1 {L}')
            a('v_lshlrev_b32 v4, 3, v4'); a('v_add_u32 v2, v2, v4')
            a(f's_lshl_b32 s{sA+3}, s{sA+1}, 5')
            a(f'v_add_u32 v3, s{sA+3}, v2')
            for jt in range(4): a(f'v_add_u32 v{20+jt}, {32*jt}, v3')
            a(f's_lshl_b32 s{sA+3}, s{sA+1}, 7'); a(f's_sub_u32 s{sA+3}, 128, s{sA+3}'); a(f'v_add_u32 v24, s{sA+3}, v2')
            a.label(L)
            steps = [(32*s*160, (32*s + 16)*160, s) for s in range(5)]
        else:
            steps = [(r1*160, r2*160, max(r1, r2)//32 if False else (max(r1, r2) + 15)//32) for r1, r2 in
                     [(0, 16), (48, 64), (32, 80), (96, 112), (144, 160), (128, 176)]]
        nj = 5; addr = lambda jt: (20 + jt, 0)
    nfr = len(steps) * nj
    a(f's_mul_i32 s{sA}, s{sV}, {nfr*1024}'); a(f's_add_u32 s{sA}, s{sA}, s{sA+7}')
    a('v_lshlrev_b32 v1, 4, v0')
    f = 0; pend = []
    def flush(upto):
        while len(pend) > upto:
            ff, tok = pend.pop(0)
            a.wait_lg(tok)
            if ff and ff % 4 == 0: a(f's_add_u32 s{sA}, s{sA}, 4096')
            a.vm(f'buffer_store_dwordx4 v[{32+4*ff}:{35+4*ff}], v1, s[{R_WS}:{R_WS+3}], s{sA} offen offset:{(ff%4)*1024} sc1')
    a.wait_vm(tg[-1])
    for o1, o2, gi in steps:
        for jt in range(nj):
            r, off = addr(jt)
            a.ds(f'ds_read_b64_tr_b16 v[{32+4*f}:{33+4*f}], v{r} offset:{o1 + off}')
            t = a.ds(f'ds_read_b64_tr_b16 v[{34+4*f}:{35+4*f}], v{r} offset:{o2 + off}')
            pend.append((f, t)); f += 1
            flush(4)
    flush(0)

def prepass_odd():
    a(f's_lshr_b32 s{sU0}, s{sJ}, 1'); a(f's_lshl_b32 s{sU0}, s{sU0}, 3'); a(f's_add_u32 s{sU0}, s{sU0}, s{sX}')
    tag_ready()
    L3 = a.newlabel('pw3'); LD = a.newlabel('pdone'); L2 = a.newlabel('pw2'); LG = a.newlabel('pgo')
    a(f's_cmp_ge_u32 s{sU0}, 64'); a(f's_cbranch_scc1 {L3}')
    a(f's_and_b32 s{sA+5}, s{sU0}, 31'); a(f's_lshr_b32 s{sA+6}, s{sU0}, 5')
    a(f's_cmp_lg_u32 s{sA+6}, 0'); a(f's_cbranch_scc1 {L2}')
    srd(R_A, P_W1, 819200); a(f's_mov_b32 s{sA+7}, {W1F}'); a(f's_branch {LG}')
    a.label(L2); srd(R_A, P_W2, 819200); a(f's_mov_b32 s{sA+7}, {W2F}')
    a.label(LG)
    prepass('w12'); a(f's_branch {LD}')
    a.label(L3)
    a.vm_done = a.vm_n; a.lg_done = a.lg_n
    a(f's_sub_u32 s{sA+5}, s{sU0}, 64'); srd(R_A, P_W3, 1966080); a(f's_mov_b32 s{sA+7}, {W3F}')
    prepass('w3')
    a.label(LD)
    a(f's_lshl_b32 s{sA}, s{sU0}, 7'); a(f's_add_u32 s{sA}, s{sA}, {FW}')
    a.wait_all()
    set_flag(sA, 2)

def kgen():
    sD = sA
    a(f's_add_u32 s{sD}, s{sD0}, s{sW}')
    srd(R_A, P_LA, 245760); srd(R_B, P_AI, 245760); srd(R_C, P_CR, 245760); srd(R_D, P_CI, 245760)
    a(f's_mul_i32 s{sA+1}, s{sD}, 384')
    a('v_lshlrev_b32 v1, 2, v0'); a('v_lshlrev_b32 v2, 1, v0')
    for k in range(4): a(f'v_mov_b32 v{8+k}, 0')
    for k, R in enumerate((R_A, R_B, R_C, R_D)):
        a.vm(f'buffer_load_dword v{4+k}, v1, s[{R}:{R+3}], s{sA+1} offen')
        a.vm(f'buffer_load_short_d16_hi v{8+k}, v2, s[{R}:{R+3}], s{sA+1} offen offset:256')
    a(f's_lshl_b32 s{sA+2}, s{sD}, 1'); a(f's_and_b32 s{sA+2}, s{sA+2}, 0xfffffffc')
    a(f's_add_u32 s{sA+4}, s{P_DT}, s{sA+2}'); a(f's_addc_u32 s{sA+5}, s{P_DT+1}, 0')
    a(f's_load_dword s{sA+3}, s[{sA+4}:{sA+5}], 0')
    a(f's_mul_i32 s{sA+6}, s{sW}, {FB}')
    a(f's_mov_b32 s{sKC}, 0'); a(f's_cmp_eq_u32 s{sW}, 1'); a(f's_cselect_b32 s{sKC}, {KCS[1]}, s{sKC}')
    a(f's_cmp_eq_u32 s{sW}, 2'); a(f's_cselect_b32 s{sKC}, {KCS[2]}, s{sKC}')
    a(f'v_lshlrev_b32 v2, 3, v0'); a(f'v_add_u32 v2, s{sA+6}, v2')
    a(f'v_add_u32 v1, s{sA+6}, v1'); a('v_add_u32 v1, 512, v1')
    tag_ready()
    a(f's_bitcmp1_b32 s{sD}, 0'); a(f's_cselect_b32 s{sA+2}, 0, 16')
    a(f's_lshl_b32 s{sA+3}, s{sA+3}, s{sA+2}'); a(f's_and_b32 s{sA+3}, s{sA+3}, 0xffff0000')
    LOG2E = '0x3fb8aa3b'
    a(f'v_mov_b32 v3, s{sA+3}'); a(f'v_mul_f32 v3, {LOG2E}, v3'); a('v_exp_f32 v3, v3'); bf(3, 3)
    a(f's_mov_b32 s{sA+4}, 0xffff0000')
    a.wait_all_vm()
    for k, base, st in ((0, 12, 1), (1, 15, 1), (2, 18, 2), (3, 19, 2)):
        a(f'v_lshlrev_b32 v{base}, 16, v{4+k}'); a(f'v_and_b32 v{base+st}, s{sA+4}, v{4+k}'); a(f'v_mov_b32 v{base+2*st}, v{8+k}')
    for m in range(3): a(f'v_mul_f32 v{12+m}, {LOG2E}, v{12+m}')
    for m in range(3): a(f'v_exp_f32 v{12+m}, v{12+m}')
    for m in range(3): bf(12+m, 12+m)
    a('v_max3_f32 v4, |v18|, |v19|, |v20|'); a('v_max3_f32 v5, |v21|, |v22|, |v23|'); a('v_max_f32 v4, v4, v5')
    for m in ('quad_perm:[1,0,3,2]', 'quad_perm:[2,3,0,1]', 'row_half_mirror', 'row_mirror'):
        a(f'v_max_f32_dpp v4, v4, v4 {m} row_mask:0xf bank_mask:0xf')
    a('v_mov_b32 v5, v4'); a('v_permlane16_swap_b32 v4, v5'); a('v_max_f32 v4, v4, v5')
    a('v_mov_b32 v5, v4'); a('v_permlane32_swap_b32 v4, v5'); a('v_max_f32 v4, v4, v5')
    a('v_frexp_exp_i32_f32 v4, v4')
    a('v_add_f32 v5, v3, v3'); a('v_ldexp_f32 v5, v5, v4'); a('v_sub_u32 v4, 0, v4')
    a(f'v_readfirstlane_b32 s{sYSC}, v5')
    for k in range(6): a(f'v_ldexp_f32 v{18+k}, v{18+k}, v4')
    for m in range(3):
        a(f'v_mul_f32 v{12+m}, v{12+m}, v3'); a(f'v_mul_f32 v{15+m}, v{15+m}, v3')
    for m in range(3):
        a(f'v_mul_f32 v{12+m}, 0xbfb8aa3b, v{12+m}'); a(f'v_mul_f32 v{15+m}, 0.15915494, v{15+m}')
    for (E, t, conj) in ((24, 1.0, 0), (30, 8.0, 1), (36, 256.0, 0)):
        tl = {1.0: '1.0', 8.0: '0x41000000', 256.0: '0x43800000'}[t]
        for m in range(3):
            a(f'v_mul_f32 v{4+m}, {tl}, v{12+m}'); a(f'v_mul_f32 v{8+m}, {tl}, v{15+m}')
        for m in range(3):
            a(f'v_exp_f32 v{4+m}, v{4+m}'); a(f'v_fract_f32 v{8+m}, v{8+m}')
        for m in range(3):
            a(f'v_cos_f32 v{E+2*m}, v{8+m}'); a(f'v_sin_f32 v{E+2*m+1}, v{8+m}')
        for m in range(3):
            a(f'v_mul_f32 v{E+2*m}, v{E+2*m}, v{4+m}')
            a(f'v_mul_f32 v{E+2*m+1}, v{E+2*m+1}, v{4+m}') if not conj else a(f'v_mul_f32_e64 v{E+2*m+1}, -v{E+2*m+1}, v{4+m}')
    TMP = 60
    def cm3(d, x, e):
        for m in range(3): a(f'v_pk_mul_f32 v[{TMP+2*m}:{TMP+2*m+1}], v[{x+2*m}:{x+2*m+1}], v[{e+2*m}:{e+2*m+1}] op_sel_hi:[1,0]')
        for m in range(3): a(f'v_pk_fma_f32 v[{d+2*m}:{d+2*m+1}], v[{x+2*m}:{x+2*m+1}], v[{e+2*m}:{e+2*m+1}], v[{TMP+2*m}:{TMP+2*m+1}] op_sel:[1,1,0] op_sel_hi:[0,1,1] neg_lo:[1,0,0]')
    cnt = [0]
    def row(r, x):
        o = 68 + 4*(cnt[0] % 3); cnt[0] += 1
        for m in range(3): a(f'v_cvt_pk_f16_f32 v{o+m}, v{x+2*m}, v{x+2*m+1}')
        a.ds(f'ds_write_b64 v2, v[{o}:{o+1}] offset:{r*FROW}'); a.ds(f'ds_write_b32 v1, v{o+2} offset:{r*FROW}')
    C, E1, E8, E256, E2, E4, X, G = 18, 24, 30, 36, 42, 48, 54, 80
    row(0, C); cm3(X, C, E1); row(1, X)
    for r in range(2, 8): cm3(X, X, E1); row(r, X)
    cm3(E2, E1, E1); cm3(E4, E2, E2)
    cm3(G, C, E256); row(8, G); cm3(X, G, E2); row(9, X); cm3(X, X, E2); row(10, X); cm3(X, X, E2); row(11, X)
    cm3(G, G, E256); row(12, G); cm3(X, G, E4); row(13, X)
    cm3(G, G, E256); row(14, G); cm3(X, G, E4); row(15, X)
    for r in range(16, 21): cm3(G, G, E256); row(r, G)
    a('v_mov_b32 v86, 0x00003c00'); a('v_mov_b32 v87, 0x00003c00')
    a.ds(f'ds_write_b64 v2, v[86:87] offset:{21*FROW}'); a.ds(f'ds_write_b32 v1, v86 offset:{21*FROW}')
    row(22, E8); cm3(X, E8, E8); row(23, X)
    for r in range(24, 53): cm3(X, X, E8); row(r, X)
    stamp(1)
    a('v_and_b32 v4, 31, v0'); a(f'v_mul_u32_u24 v4, {FROW}, v4'); a('v_lshrrev_b32 v5, 5, v0'); a('v_lshlrev_b32 v5, 4, v5')
    a('v_add_u32 v4, v4, v5'); a(f'v_add_u32 v4, s{sA+6}, v4')
    NB = 6
    tk = {}
    def rd(st):
        o = 32 + 8*(st % NB)
        a.ds(f'ds_read_b128 v[{o}:{o+3}], v4 offset:{32*st}')
        tk[st] = a.ds(f'ds_read_b128 v[{o+4}:{o+7}], v4 offset:{32*st + 21*FROW}')
    for st in range(NB): rd(st)
    a('v_and_b32 v5, 31, v0'); a('v_lshrrev_b32 v6, 5, v0')
    a(f's_add_u32 s{sA+1}, s{sKC}, {TABO + 16}')
    a('v_lshlrev_b32 v7, 5, v5'); a('v_lshlrev_b32 v8, 4, v6'); a('v_add_u32 v7, v7, v8'); a(f'v_add_u32 v7, s{sA+1}, v7')
    a('v_cmp_eq_u32 vcc, 0, v6')
    a('v_lshlrev_b32 v8, 4, v5'); a('v_add_u32 v8, 1024, v8'); a('v_lshlrev_b32 v9, 3, v5'); a('v_add_u32 v9, 1536, v9')
    a('v_cndmask_b32 v8, v9, v8, vcc'); a(f'v_add_u32 v8, s{sA+1}, v8')
    a('v_mov_b32 v9, 256'); a('v_cndmask_b32 v9, v9, 8, vcc'); a('v_add_u32 v9, v8, v9')
    a('v_lshlrev_b32 v10, 9, v6'); a('v_lshlrev_b32 v11, 2, v5'); a('v_add_u32 v10, v10, v11'); a('v_add_u32 v10, 2048, v10'); a(f'v_add_u32 v10, s{sA+1}, v10')
    a('v_lshlrev_b32 v11, 4, v0'); a(f'v_add_u32 v11, s{sA+1}, v11')
    a('v_lshlrev_b32 v12, 3, v0'); a(f'v_add_u32 v12, s{sA+1}, v12')
    a('v_cmp_eq_u32 vcc, 0, v0'); a('v_mov_b32 v13, 1016'); a('v_mov_b32 v14, 1012'); a('v_cndmask_b32 v13, v13, v14, vcc'); a('v_add_u32 v13, v13, v12')
    a('v_lshlrev_b32 v14, 3, v0'); a(f'v_add_u32 v14, s{sKC}, v14')
    a('v_lshlrev_b32 v15, 4, v0'); a(f'v_add_u32 v15, s{sKC}, v15')
    a('v_lshlrev_b32 v28, 5, v0'); a(f'v_add_u32 v28, s{sKC}, v28')
    a('v_lshrrev_b32 v29, 1, v0'); a('v_and_b32 v29, 3, v29'); a(f'v_mul_u32_u24 v29, {CPS}, v29'); a('v_and_b32 v30, 1, v0'); a('v_lshlrev_b32 v30, 4, v30')
    a('v_add_u32 v29, v29, v30'); a(f'v_add_u32 v29, s{sKC}, v29')
    for k in range(4): a(f'v_mov_b32 v{24+k}, 0')
    a(f'v_mov_b32 v30, s{sA+1}')
    ACC = 96
    for st in range(24):
        o = 32 + 8*(st % NB)
        a.wait_lg(tk[st])
        c = '0' if st == 0 else f'v[{ACC}:{ACC+15}]'
        a(f'v_mfma_f32_32x32x16_f16 v[{ACC}:{ACC+15}], v[{o}:{o+3}], v[{o+4}:{o+7}], {c}')
        if st + NB < 24: rd(st + NB)
    a(f'v_subrev_u32 v30, 16, v30')
    a.ds('ds_write_b128 v30, v[24:27]'); a.ds('ds_write_b128 v29, v[24:27]')
    a.ds(f'ds_write_b128 v7, v[{ACC}:{ACC+3}]')
    a.ds(f'ds_write_b64 v8, v[{ACC+4}:{ACC+5}]'); a.ds(f'ds_write_b64 v9, v[{ACC+6}:{ACC+7}]')
    for c in range(4): a.ds(f'ds_write_b32 v10, v{ACC+8+c} offset:{128*c}')
    a(f'v_subrev_u32 v31, 16, v11')
    t0a = a.ds('ds_read_b128 v[32:35], v31'); t0 = a.ds('ds_read_b128 v[36:39], v11')
    a.ds('ds_read2_b32 v[40:41], v13 offset0:0 offset1:1'); a.ds('ds_read_b32 v42, v13 offset:8')
    a.ds('ds_read_b64 v[44:45], v12 offset:1024'); t1 = a.ds('ds_read_b32 v46, v12 offset:1032')
    a.ds('ds_read2_b32 v[48:49], v13 offset0:129 offset1:130'); a.ds('ds_read_b64 v[50:51], v12 offset:1536'); t2 = a.ds('ds_read_b32 v52, v12 offset:1544')
    a.ds('ds_read_b32 v54, v13 offset:1032'); a.ds('ds_read_b64 v[56:57], v12 offset:2048'); t3 = a.ds('ds_read_b32 v58, v12 offset:2056')
    segs = [(t0, [33, 34, 35, 36, 37, 38, 39], 14, 32),
            (t1, [40, 41, 42, 44, 44, 45, 46], 14, 32 + 512),
            (t2, [48, 49, 50] + [50, 50, 50, 51, 51, 51, 52, 52], 15, 32 + 1024),
            (t3, [54, 56, 56] + [56]*5 + [57]*7 + [58]*4, 28, 32 + 2048)]
    o = 60
    for tok, seq, va, base in segs:
        a.wait_lg(tok)
        n = len(seq) - 3
        for s in range(4):
            el = seq[3 - s: 3 - s + n]
            nd = n // 2
            if o + nd > 112: o = 60
            for k in range(nd): a(f'v_cvt_pk_f16_f32 v{o+k}, v{el[2*k]}, v{el[2*k+1]}')
            if nd == 2: a.ds(f'ds_write_b64 v{va}, v[{o}:{o+1}] offset:{base + s*CPS}')
            else:
                for k in range(0, nd, 4): a.ds(f'ds_write_b128 v{va}, v[{o+k}:{o+k+3}] offset:{base + s*CPS + 4*k}')
            o += nd

def wload_list():
    L = []
    for f in range(100):
        pre = []
        if f == 0:
            pre = [f's_lshl_b32 s{sU0}, s{sG}, 2', f's_add_u32 s{sU0}, s{sU0}, s{sW}', f's_mul_i32 s{sU0}, s{sU0}, 51200',
                   f's_add_u32 s{sU1}, s{sU0}, {W2F}', f's_add_u32 s{sU0}, s{sU0}, {W1F}']
        s = sU0 if f < 50 else sU1; ff = f % 50
        if ff and ff % 4 == 0: pre.append(f's_add_u32 s{s}, s{s}, 4096')
        L.append((pre, f'buffer_load_dwordx4 {Q(f)}, v110, s[{R_WS}:{R_WS+3}], s{s} offen offset:{(ff%4)*1024}'))
    return L

def conv():
    ACC = 0 + 8; AF = 40; BF = 72
    vA, vB, vW, vO = 104, 105, 106, 107
    a('v_and_b32 v1, 15, v0'); a('v_lshrrev_b32 v2, 4, v0')
    a('v_sub_u32 v3, 15, v1'); a('v_and_b32 v3, 3, v3')
    a(f'v_mul_u32_u24 v4, {CPS}, v3'); a('v_add_u32 v3, v3, v1'); a('v_lshlrev_b32 v5, 3, v2'); a('v_add_u32 v3, v3, v5')
    a('v_add_u32 v3, 1, v3'); a('v_lshlrev_b32 v3, 1, v3'); a('v_add_u32 v3, v3, v4'); a(f'v_add_u32 v{vA}, s{sKC}, v3')
    a(f's_mul_i32 s{sA}, s{sW}, {URS}'); a(f's_add_u32 s{sA}, s{sA}, {URB}')
    a('v_lshlrev_b32 v3, 5, v1'); a('v_lshlrev_b32 v4, 4, v2'); a('v_sub_u32 v4, v4, v3'); a('v_add_u32 v4, 480, v4'); a(f'v_add_u32 v{vB}, s{sA}, v4')
    a('v_lshlrev_b32 v4, 3, v2'); a('v_add_u32 v3, v3, v4'); a('v_add_u32 v3, 4608, v3'); a(f'v_add_u32 v{vW}, s{sA}, v3')
    a(f's_add_u32 s{sA+1}, s{sD0}, s{sW}'); a(f's_lshr_b32 s{sA+2}, s{sA+1}, 2'); a(f's_and_b32 s{sA+2}, s{sA+2}, 1')
    a(f's_lshl_b32 s{sA+1}, s{sA+1}, 7'); a(f's_add_u32 s{sA+1}, s{sA+1}, {HT}')
    a('v_lshrrev_b32 v3, 2, v1'); a('v_mul_u32_u24 v3, 81920, v3'); a('v_add_u32 v3, v3, v4')
    a('v_lshrrev_b32 v4, 1, v1'); a('v_and_b32 v4, 1, v4'); a('v_lshlrev_b32 v4, 6, v4'); a('v_add_u32 v3, v3, v4')
    a('v_and_b32 v4, 1, v1'); a(f'v_xor_b32 v4, s{sA+2}, v4'); a('v_lshlrev_b32 v4, 5, v4'); a(f'v_add_u32 v{vO}, v3, v4')
    a('v_lshlrev_b32 v110, 4, v0')
    barrier()
    stamp(4)
    tA = {}; tB = {}
    def rdA(rho, jj):
        o = AF + 4*jj
        a.ds(f'ds_read_b64 v[{o}:{o+1}], v{vA} offset:{64*rho + 512*jj}')
        tA[jj] = a.ds(f'ds_read_b64 v[{o+2}:{o+3}], v{vA} offset:{64*rho + 512*jj + 8}')
    def rdB(rho, dl):
        o = BF + 4*dl
        tB[dl] = a.ds(f'ds_read_b128 v[{o}:{o+3}], v{vB} offset:{64*rho + 512*(7-dl)}')
    for k in range(8): rdB(0, k); rdA(0, 7-k)
    wl = wload_list(); first = set()
    n = 0
    for rho in range(8):
        for jj in range(7, -1, -1):
            for dl in range(0, 8 - jj):
                I = jj + dl
                a.wait_lg(max(tA[jj], tB[dl]))
                c = f'v[{ACC+4*I}:{ACC+4*I+3}]' if I in first else '0'
                first.add(I)
                a(f'v_mfma_f32_16x16x32_f16 v[{ACC+4*I}:{ACC+4*I+3}], v[{AF+4*jj}:{AF+4*jj+3}], v[{BF+4*dl}:{BF+4*dl+3}], {c}')
                n += 1
                if jj == 0 and rho < 7: rdB(rho + 1, dl)
                elif wl and not (dl == 7 - jj and rho < 7) and (n % 3 != 0):
                    pre, ld = wl.pop(0)
                    for p in pre: a(p)
                    a.vm(ld)
            if rho < 7: rdA(rho + 1, jj)
    assert not wl
    tw = [a.ds(f'ds_read_b64 v[{AF+2*I}:{AF+2*I+1}], v{vW} offset:{512*I}') for I in range(8)]
    a(f's_mov_b32 s{sA+2}, 0xffff0000'); a(f's_mov_b32 s{sA+4}, s{sYSC}'); a(f's_mov_b32 s{sA+5}, s{sYSC}')
    for I in range(8):
        a.wait_lg(tw[I]); F = BF + 4*I
        for k in range(2):
            a(f'v_lshlrev_b32 v{F+2*k}, 16, v{AF+2*I+k}'); a(f'v_and_b32 v{F+2*k+1}, s{sA+2}, v{AF+2*I+k}')
        for k in range(2):
            a(f'v_pk_fma_f32 v[{F+2*k}:{F+2*k+1}], v[{ACC+4*I+2*k}:{ACC+4*I+2*k+1}], s[{sA+4}:{sA+5}], v[{F+2*k}:{F+2*k+1}]')
        for k in range(2): a(f'v_cvt_pk_bf16_f32 v{56+2*I+k}, v{F+2*k}, v{F+2*k+1}')
        a.vm(f'buffer_store_dwordx2 v[{56+2*I}:{57+2*I}], v{vO}, s[{R_WS}:{R_WS+3}], s{sA+1} offen sc1')
        if I < 7: a(f's_add_u32 s{sA+1}, s{sA+1}, 327680')

def front():
    LN = a.newlabel('ln0'); LP = a.newlabel('pre'); LM = a.newlabel('merge'); LW = a.newlabel('wl'); LI = a.newlabel('no4')
    a(f's_cmp_eq_u32 s{sW}, 3'); a(f's_cbranch_scc1 {LN}')
    a(f's_cmp_ge_u32 s{sW}, s{sNCH}'); a(f's_cbranch_scc1 {LP}')
    kgen(); stamp(3); conv(); stamp(5); a.wait_all(); a(f's_branch {LM}')
    a.label(LP); prepass_odd(); stamp(3); a(f's_branch {LW}')
    a.label(LN); a.vm_done = a.vm_n; a.lg_done = a.lg_n
    ln0()
    a.label(LW)
    barrier()
    stamp(4)
    a(f's_cmp_eq_u32 s{sW}, 3'); a(f's_cbranch_scc0 {LI}')
    a(f's_bitcmp1_b32 s{sJ}, 0'); a(f's_cbranch_scc1 {LI}')
    a(f's_cmp_ge_u32 s{sJ}, 16'); a(f's_cbranch_scc1 {LI}')
    a(f's_lshr_b32 s{sA+5}, s{sJ}, 1'); a(f's_lshl_b32 s{sA+5}, s{sA+5}, 3'); a(f's_add_u32 s{sA+5}, s{sA+5}, s{sX}')
    srd(R_A, P_W4, 1966080); a(f's_mov_b32 s{sA+7}, {W4F}')
    prepass('w4')
    a(f's_lshl_b32 s{sA}, s{sA+5}, 7'); a(f's_add_u32 s{sA}, s{sA}, {F4}')
    a.wait_all(); set_flag(sA, 2)
    a.label(LI)
    a('v_lshlrev_b32 v110, 4, v0')
    for pre, ld in wload_list():
        for p in pre: a(p)
        a.vm(ld)
    stamp(5)
    a.wait_all()
    a.label(LM)
    a('s_barrier')
    stamp(6)

def epilogue_end():
    if OPT['ts']:
        a(f's_lshl_b32 s{sA}, s2, 2'); a(f's_add_u32 s{sA}, s{sA}, s{sW}'); a(f's_lshl_b32 s{sA}, s{sA}, 6'); a(f's_add_u32 s{sA}, s{sA}, {TS}')
        a('v_mov_b32 v1, 0')
        for k in range(16): a(f'v_mov_b32 v{4+k}, s{sTS+k}')
        a('s_mov_b64 exec, 1')
        for k in range(4): a(f'buffer_store_dwordx4 v[{4+4*k}:{7+4*k}], v1, s[{R_WS}:{R_WS+3}], s{sA} offen offset:{16*k}')
        a.wait_all()
    a.label('END')
    a('s_endpgm')

import gemm
gemm.setup(globals())

prologue()
front()
if OPT['stop'] > 1: gemm.g1()
if OPT['stop'] > 2: gemm.g2()
if OPT['stop'] > 3: gemm.g3()
if OPT['stop'] > 4: gemm.g4()
if OPT['stop'] <= 1: gemm.epoch_only()
epilogue_end()

hdr = open(os.path.join(os.path.dirname(os.path.abspath(__file__)), '..', 'cdna_kernels', NAME + '.s.ref')).read().split('\n')
head = [l for l in hdr if l.startswith(';') and '@launch' not in l]
head = head[:next(i for i, l in enumerate(head) if 'Override launch' in l)]
txt = '\n'.join(head) + '\n; @launch grid=(256,1,1) block=(256,1,1) lds=163840\n'
txt += f'''.amdgcn_target "amdgcn-amd-amdhsa--gfx950"
.text
.globl {NAME}_kernel
.p2align 8
.type {NAME}_kernel,@function
{NAME}_kernel:
''' + a.finish() + f'''.section .rodata,"a"
.p2align 6
.amdhsa_kernel {NAME}_kernel
  .amdhsa_next_free_vgpr 512
  .amdhsa_next_free_sgpr 102
  .amdhsa_accum_offset 256
  .amdhsa_group_segment_fixed_size 0
  .amdhsa_kernarg_size 120
  .amdhsa_user_sgpr_count 2
  .amdhsa_user_sgpr_kernarg_segment_ptr 1
  .amdhsa_system_sgpr_workgroup_id_x 1
.end_amdhsa_kernel
'''
open(sys.argv[1], 'w').write(txt)
print('wrote', sys.argv[1], len(txt), 'bytes', txt.count('\n'), 'lines')
```

```python
import re

REG_RE = re.compile(r'\b([vas])(\d+)\b|\b([vas])\[(\d+):(\d+)\]|\b(vcc|exec|m0)(_lo|_hi)?\b')

def regs_of(op):
    out = set()
    for m in REG_RE.finditer(op):
        if m.group(1): out.add((m.group(1), int(m.group(2))))
        elif m.group(3):
            for i in range(int(m.group(4)), int(m.group(5)) + 1): out.add((m.group(3), i))
        else: out.add((m.group(6), 0))
    return out

def split_ops(s):
    ops, depth, cur = [], 0, ''
    for ch in s:
        if ch == '[': depth += 1
        if ch == ']': depth -= 1
        if ch == ',' and depth == 0: ops.append(cur.strip()); cur = ''
        else: cur += ch
    if cur.strip(): ops.append(cur.strip())
    return ops

TRANS = ('v_exp_', 'v_log_', 'v_rcp_', 'v_rsq_', 'v_sqrt_', 'v_sin_', 'v_cos_')

class I:
    def __init__(self, text):
        self.text = text
        t = text.split(';')[0].strip()
        self.label = t.endswith(':')
        self.dirv = t.startswith('.') or t == ''
        if self.label or self.dirv:
            self.op = ''; self.w = set(); self.r = set(); self.kind = 'x'; return
        parts = t.split(None, 1)
        self.op = op = parts[0]
        ops = split_ops(parts[1]) if len(parts) > 1 else []
        if ops: ops[-1] = ops[-1].split()[0] if not ops[-1].startswith('-') or True else ops[-1]
        self.ops = ops
        R = [regs_of(o) for o in ops]
        w, r = set(), set()
        self.A = self.B = self.C = set()
        if op.startswith('v_mfma'):
            self.kind = 'mfma'; w = R[0]; self.A, self.B, self.C = R[1], R[2], R[3]; r = R[1] | R[2] | R[3]
            self.passes = 8 if '32x32' in op else 4
        elif op.startswith('v_'):
            self.kind = 'valu'
            if op.startswith('v_permlane') and 'swap' in op: w = R[0] | R[1]; r = R[0] | R[1]
            elif op.startswith('v_cmp'): w = R[0]; r = set().union(*R[1:])
            elif '_co_' in op: w = R[0] | R[1]; r = set().union(*R[2:])
            elif op == 'v_nop': pass
            else:
                w = R[0]; r = set().union(*R[1:]) if len(R) > 1 else set()
                if op.startswith(('v_fmac', 'v_dot2c', 'v_writelane')) or 'dpp' in op or 'sdwa' in op or '_d16' in op or op.startswith('v_cvt_f16'): r |= R[0]
                if op.startswith('v_cndmask') and len(ops) == 3: r.add(('vcc', 0))
            if op.startswith('v_cmpx'): w.add(('exec', 0))
        elif op.startswith('ds_'):
            self.kind = 'ds'
            if op.startswith(('ds_read', 'ds_bpermute', 'ds_permute', 'ds_swizzle')): w = R[0]; r = set().union(*R[1:])
            else: r = set().union(*R)
        elif op.startswith(('buffer_', 'global_')):
            self.kind = 'vmem'
            self.lds = ' lds' in t
            if op == 'buffer_wbl2': R = [set()]
            if '_load' in op and not self.lds: w = R[0]; r = set().union(*R[1:])
            else: r = set().union(*R)
            if 'd16' in op: r |= R[0]
            self.wide = ('store' in op and ('x4' in op or 'x3' in op))
            if self.wide: self.data = R[0] if op.startswith('buffer') else R[1]
        elif op.startswith('s_'):
            self.kind = 'salu'
            if op.startswith(('s_cmp', 's_cbranch', 's_branch', 's_waitcnt', 's_nop', 's_barrier', 's_endpgm', 's_sleep', 's_setprio', 's_bitcmp')): r = set().union(*R) if R else set()
            else:
                w = R[0] if R else set(); r = set().union(*R[1:]) if len(R) > 1 else set()
                if 'saveexec' in op: w = w | {('exec', 0)}
        else:
            raise ValueError(text)
        self.w, self.r = w, r
    def states(self):
        if self.op == 's_nop': return int(self.ops[0], 0) + 1
        return 1

def isv(x): return x[0] in 'va'

def need(p, c):
    n = 0
    pv = {x for x in p.w if isv(x)}
    ps = {x for x in p.w if not isv(x)}
    if p.kind == 'valu':
        if c.kind == 'mfma' and pv & c.r: n = max(n, 2)
        if c.kind == 'mfma' and ('exec', 0) in p.w: n = max(n, 4)
        if c.kind == 'valu':
            if ('dpp' in c.op or c.op.startswith('v_permlane')) and pv & c.r: n = max(n, 2)
            if c.op.startswith(('v_readlane', 'v_readfirstlane')) and pv & c.r: n = max(n, 1)
            if p.op.startswith(TRANS) and pv & c.r: n = max(n, 1)
            if p.op.startswith('v_dot') and pv & (c.r | c.w):
                if c.op == p.op and len(c.ops) == 4 and not (pv & (regs_of(c.ops[1]) | regs_of(c.ops[2]))): pass
                else: n = max(n, 3)
            if ('sdwa' in p.op or 'op_sel' in p.text and not p.op.startswith('v_pk_') or p.op.startswith('v_cvt_f16')) and pv & (c.r | c.w): n = max(n, 1)
            if ps & c.r:
                n = max(n, 4 if c.op.startswith(('v_readlane', 'v_writelane')) else 2)
            if ('exec', 0) in p.w:
                if 'dpp' in c.op: n = max(n, 5)
                if c.op.startswith(('v_readlane', 'v_readfirstlane', 'v_writelane', 'v_permlane')): n = max(n, 4)
        if c.kind in ('vmem', 'ds') and p.op.startswith('v_dot') and pv & c.r: n = max(n, 3)
        if c.kind == 'vmem' and ps & c.r: n = max(n, 5)
        if c.kind == 'salu' and ps & c.r: n = max(n, 2)
    if p.kind == 'mfma':
        big = 12 if p.passes == 8 else 8
        if c.kind == 'mfma':
            if pv & (c.A | c.B): n = max(n, big)
            if pv & c.C and not (pv == c.C and c.passes == p.passes): n = max(n, big - 2)
        elif c.kind in ('valu', 'vmem', 'ds'):
            if pv & (c.r | c.w): n = max(n, big)
            if c.kind == 'valu' and p.C & c.w: n = max(n, 7 if p.passes == 8 else 3)
    if p.kind == 'vmem' and getattr(p, 'wide', False) and c.kind in ('valu', 'mfma', 'ds', 'vmem') and p.data & c.w: n = max(n, 2)
    if p.kind == 'ds' and p.op.startswith(('ds_write_b128', 'ds_write_b96')) and c.kind == 'valu' and p.r & c.w: n = max(n, 2)
    if p.kind == 'salu' and ('m0', 0) in p.w and c.kind == 'vmem' and c.lds: n = max(n, 1)
    return n

class Asm:
    def __init__(self):
        self.ins = []
        self.vm_n = 0; self.vm_done = 0
        self.lg_n = 0; self.lg_done = 0
        self.uid = 0
    def __call__(self, text):
        for line in text.split('\n'):
            line = line.strip()
            if not line: continue
            i = I(line); self.ins.append(i)
            if i.kind == 'vmem': self.vm_n += 1
            if i.kind == 'ds': self.lg_n += 1
            if i.op.startswith(('s_load', 's_memtime', 's_memrealtime')): self.smem = True
        return self
    def vm(self, text):
        self(text); return self.vm_n
    def ds(self, text):
        self(text); return self.lg_n
    def wait_vm(self, tok):
        if tok <= self.vm_done: return
        n = min(self.vm_n - tok, 63)
        self(f's_waitcnt vmcnt({n})'); self.vm_done = self.vm_n - n
    def wait_lg(self, tok):
        if tok <= self.lg_done: return
        n = min(self.lg_n - tok, 15)
        self(f's_waitcnt lgkmcnt({n})'); self.lg_done = self.lg_n - n
    def wait_all_vm(self): self('s_waitcnt vmcnt(0)'); self.vm_done = self.vm_n
    def wait_all_lg(self): self('s_waitcnt lgkmcnt(0)'); self.lg_done = self.lg_n
    def wait_all(self): self('s_waitcnt vmcnt(0) lgkmcnt(0)'); self.vm_done = self.vm_n; self.lg_done = self.lg_n
    def label(self, name): self(f'{name}:')
    def newlabel(self, base):
        self.uid += 1; return f'{base}_{self.uid}'
    def finish(self):
        out = []; real = []
        for c in self.ins:
            if c.kind == 'x':
                out.append(c.text); continue
            dist = 0; pad = 0
            for p in reversed(real[-24:]):
                n = need(p, c)
                if n - dist > pad: pad = n - dist
                dist += p.states()
                if dist >= 13: break
            while pad > 0:
                k = min(pad, 16); nop = I(f's_nop {k-1}'); out.append('  ' + nop.text); real.append(nop); pad -= k
            out.append('  ' + c.text); real.append(c)
        return '\n'.join(out) + '\n'

def V(i, n=1): return f'v{i}' if n == 1 else f'v[{i}:{i+n-1}]'
def A(i, n=1): return f'a{i}' if n == 1 else f'a[{i}:{i+n-1}]'
def S(i, n=1): return f's{i}' if n == 1 else f's[{i}:{i+n-1}]'
```

```python
import sys, os
from asmlib import *
NAME = 'sequential_preLN__ssm_conv_s4d__mixer_s_mlp__prompt'
OPT = dict(stop=99, ts=0, pf=0, slow=0, b1b=5, wlp=3, warm=1, n3a=15, wb=0)
for arg in sys.argv[2:]:
    k, v = arg.split('='); OPT[k] = int(v)
FA = 0x1000; FW12 = 0x60000; FW4 = 0x64000; FW3 = 0x68000; FH = 0x10000; F1 = 0x18000; F2 = 0x20000; F3 = 0x28000
TS = 0x30000; HALO = 0x40000
ACT = 0x280000; UTS = 10368
UT = 0x80000; HT = UT + 0x290000; H1F = HT + ACT; X1F = H1F + ACT
ST = X1F + ACT; HF = ST + 0x20000; W1F = HF + 0x600000; W2F = W1F + 0xC8000; W3F = W2F + 0xC8000
W4F = W3F + 0x1E0000; WS_END = W4F + 0x1E0000
FB = 41600; FROW = 784
LS = 124800; URB = 135040; URS = 8768
KCS = [0, 61952, 83200]; CPS = 4160; TABO = 4 * CPS
WB = 21248; STG1 = 83200; STG2 = 98560
IMG = 0; RED = 81920; STX = 143360; CSP = 145408; CST = 146688
sTAG = 3; sX = 4; sJ = 5; sW = 6; sT = 7
R_WS = 8; R_F = 12; R_S = 16; R_OUT = 20; R_A = 24; R_B = 28; R_C = 32; R_D = 36
sA = 40; sTS = 48
P_X, P_LA, P_AI, P_CR, P_CI, P_DT, P_DS, P_BX, P_W1, P_W2, P_W3, P_W4, P_OUT, P_DBG, P_WS = range(64, 94, 2)
sYSC = 78; sKC = 79; sFAW = 88; sSL = 89; sE = 90; sG = 91
sD0 = 94; sNCH = 95; sLIN = 96; sCNT = 97; sRB = 98; sO = 99; sU0 = 100; sU1 = 101
vL16 = 110
a = Asm()

def ws(): return f's[{R_WS}:{R_WS+3}]'
def srd(r, p, size):
    a(f's_mov_b32 s{r}, s{p}'); a(f's_mov_b32 s{r+1}, s{p+1}')
    a(f's_mov_b32 s{r+2}, {size}'); a(f's_mov_b32 s{r+3}, 0x00020000')
def Q(i): return f'a[{4*i}:{4*i+3}]' if i < 64 else f'v[{112+4*(i-64)}:{112+4*(i-64)+3}]'
def V4(r): return f'v[{r}:{r+3}]'
def V2(r): return f'v[{r}:{r+1}]'
TSSETS = {
 1: ['start','f1','f2','f3','B1','conv','B2','FH','g1loop','g1end','F1','g2end','F2','g3end','g4end'],
 2: ['start','conv','B2','B3','FH','g1d0','g1loop','B5','g1st','g1end','F1','g2h','g2loop','B7','g4end'],
 3: ['start','B7','g2st','g2end','F2','B9','g3p1','g3loop','g3st','g3end','F3','g4d0','g4loop','B12','g4end'],
}
def stamp(k):
    if not OPT['ts']: return
    names = TSSETS[OPT['ts']]
    if k not in names: return
    k = names.index(k)
    a('s_memtime vcc'); a.wait_all_lg(); a(f's_mov_b32 s{sTS+k}, vcc_lo')
def bf(d, s):
    a(f'v_cvt_pk_bf16_f32 v{d}, v{s}, v{s}'); a(f'v_lshlrev_b32 v{d}, 16, v{d}')
def set_flag(so, vt, val=None, dual=False):
    a(f'v_mov_b32 v{vt}, s{val or sTAG}'); a(f'v_mov_b32 v{vt+1}, 0')
    a('s_mov_b64 exec, 1')
    if dual: store2(f'buffer_store_dword v{vt}, v{vt+1}', f's{so} offen')
    else: a(f'buffer_store_dword v{vt}, v{vt+1}, {ws()}, s{so} offen sc1')
    a('s_mov_b64 exec, -1')
def store2(head, tail):
    a.vm(f'{head}, s[{R_F}:{R_F+3}], {tail}')
    return a.vm(f'{head}, s[{R_S}:{R_S+3}], {tail} sc1')
def poll(srcs, vt, mask=False, between=None):
    L = a.newlabel('poll')
    a(f's_mov_b32 s{sCNT}, 0x20000')
    def issue():
        for i, (va, so) in enumerate(srcs):
            a.vm(f'buffer_load_dword v{vt+i}, v{va}, {ws()}, {"0" if so is None else "s%d" % so} offen sc1')
    if between is not None:
        issue(); between()
        E = a.newlabel('polle'); a(f's_branch {E}')
    a.label(L)
    a(f's_sub_u32 s{sCNT}, s{sCNT}, 1'); a('s_cbranch_scc1 END')
    issue()
    if between is not None: a.label(E)
    a.wait_all_vm()
    n = len(srcs)
    if n == 1 and not mask: a(f'v_cmp_ne_u32 vcc, s{sTAG}, v{vt}')
    else:
        for i in range(n): a(f'v_xor_b32 v{vt+i}, s{sTAG}, v{vt+i}')
        for i in range(1, n): a(f'v_or_b32 v{vt}, v{vt}, v{vt+i}')
        a(f'v_cmp_lt_u32 vcc, {15 if mask else 0}, v{vt}')
    a('s_nop 1')
    a(f's_cbranch_vccnz {L}')
def barrier():
    a.wait_all_lg(); a('s_barrier')
```

```python
from common import *

def prologue():
    a('s_cmp_ge_u32 s2, 256'); a('s_cbranch_scc1 END')
    a('s_load_dwordx16 s[64:79], s[0:1], 0'); a('s_load_dwordx8 s[80:87], s[0:1], 64')
    a('s_load_dwordx4 s[88:91], s[0:1], 96'); a('s_load_dwordx2 s[92:93], s[0:1], 112')
    a('v_lshrrev_b32 v1, 6, v0'); a('v_and_b32 v0, 63, v0')
    a(f's_and_b32 s{sX}, s2, 7'); a(f's_lshr_b32 s{sJ}, s2, 3')
    a(f'v_readfirstlane_b32 s{sW}, v1')
    a(f's_mul_i32 s{sD0}, s{sX}, 80'); a(f's_lshr_b32 s{sT}, s{sJ}, 1'); a(f's_mul_i32 s{sT}, s{sT}, 5')
    a(f's_add_u32 s{sD0}, s{sD0}, s{sT}'); a(f's_and_b32 s{sT}, s{sJ}, 1'); a(f's_sub_u32 s{sNCH}, 3, s{sT}')
    a(f's_mul_i32 s{sT}, s{sT}, 3'); a(f's_add_u32 s{sD0}, s{sD0}, s{sT}')
    a(f's_lshl_b32 s{sLIN}, s{sX}, 5'); a(f's_add_u32 s{sLIN}, s{sLIN}, s{sJ}')
    a(f's_lshr_b32 s{sRB}, s{sLIN}, 3'); a(f's_and_b32 s{sO}, s{sLIN}, 7')
    if OPT['pf']:
        a('s_getpc_b64 s[28:29]'); a('s_and_b32 s28, s28, 0xffffff00'); a(f's_mov_b32 s30, {OPT["pf"]*1024}'); a('s_mov_b32 s31, 0x00020000')
        a(f's_lshl_b32 s{sT}, s{sJ}, 2'); a(f's_add_u32 s{sT}, s{sT}, s{sW}'); a(f's_lshl_b32 s{sT}, s{sT}, 10')
        a('v_lshlrev_b32 v1, 4, v0')
        a(f'buffer_load_dwordx4 v[252:255], v1, s[28:31], s{sT} offen')
    a(f'v_lshlrev_b32 v{vL16}, 4, v0')
    a.wait_all_lg()
    a(f's_load_dword s{sTAG}, s[{P_WS}:{P_WS+1}], 0')
    srd(R_WS, P_WS, WS_END); srd(R_OUT, P_OUT, ACT)
    a(f's_getreg_b32 s{sFAW}, hwreg(HW_REG_XCC_ID, 0, 4)')
    a(f's_and_b32 s{sE}, s{sO}, 1'); a(f's_lshr_b32 s{sG}, s{sO}, 1')
    a(f's_lshl_b32 s{sSL}, s{sO}, 2'); a(f's_add_u32 s{sSL}, s{sSL}, s{sW}')
    if OPT['ts']:
        for k in range(16): a(f's_mov_b32 s{sTS+k}, 0')
        a('s_memrealtime vcc'); a.wait_all_lg(); a(f's_mov_b32 s{sTS+15}, vcc_lo')
        stamp('start')

def tag_ready():
    a.wait_all_lg()
    a(f's_mul_i32 s{sTAG}, s{sTAG}, 1664525'); a(f's_add_u32 s{sTAG}, s{sTAG}, 1013904223')
    a(f's_xor_b32 s{sFAW}, s{sFAW}, s{sTAG}')

def w12_addr(v):
    a(f'v_and_b32 v{v}, 1, v0'); a(f'v_lshlrev_b32 v{v}, 7, v{v}'); a(f'v_and_b32 v{v+1}, 2, v0'); a(f'v_lshlrev_b32 v{v+1}, 12, v{v+1}')
    a(f'v_add_u32 v{v}, v{v}, v{v+1}'); a(f's_lshl_b32 s{sT}, s{sSL}, 8'); a(f's_add_u32 s{sT}, s{sT}, {FW12}')
    a(f'v_add_u32 v{v}, s{sT}, v{v}')
def w3_addr(v):
    a(f'v_min_u32 v{v}, 19, v0'); a(f'v_lshlrev_b32 v{v}, 7, v{v}'); a(f's_mul_i32 s{sT}, s{sSL}, 2560'); a(f's_add_u32 s{sT}, s{sT}, {FW3}')
    a(f'v_add_u32 v{v}, s{sT}, v{v}')
def fa_addr(v):
    a(f'v_and_b32 v{v}, 7, v0'); a(f'v_lshlrev_b32 v{v}, 10, v{v}')
    a(f's_and_b32 s{sT}, s{sJ}, 24'); a(f's_lshl_b32 s{sT}, s{sT}, 3'); a(f's_add_u32 s{sT}, s{sT}, s{sX}'); a(f's_lshl_b32 s{sT}, s{sT}, 7')
    a(f's_add_u32 s{sT}, s{sT}, {FA}'); a(f'v_add_u32 v{v}, s{sT}, v{v}')
def flag_load(vd, va): return a.vm(f'buffer_load_dword v{vd}, v{va}, {ws()}, 0 offen sc1')
def check_or_poll(tok, vd, va):
    L = a.newlabel('ok')
    a.wait_vm(tok)
    a(f'v_cmp_ne_u32 vcc, s{sTAG}, v{vd}'); a('s_nop 1'); a(f's_cbranch_vccz {L}')
    sv = (a.vm_n, a.vm_done)
    poll([(va, None)], vd)
    a.vm_n, a.vm_done = sv
    a.label(L)
def fast_eval(tok, vd):
    a.wait_vm(tok)
    a(f'v_cmp_ne_u32 vcc, s{sFAW}, v{vd}'); a('s_nop 1')
    a('s_cmp_eq_u64 vcc, 0')
    if OPT['slow']: a('s_cmp_eq_u32 s2, 999')
    a(f's_cselect_b32 s{R_F+2}, {WS_END}, 0'); a(f's_cselect_b32 s{R_S+2}, 0, {WS_END}')
    for R in (R_F, R_S):
        a(f's_mov_b32 s{R}, s{R_WS}'); a(f's_mov_b32 s{R+1}, s{R_WS+1}'); a(f's_mov_b32 s{R+3}, 0x00020000')

def wload_list():
    L = []
    for f in range(50):
        pre = []
        if f == 0:
            pre = [f's_mul_i32 s{sU0}, s{sSL}, 25600', f's_add_u32 s{sU1}, s{sU0}, {W2F}', f's_add_u32 s{sU0}, s{sU0}, {W1F}']
        s = sU0 if f < 25 else sU1; ff = f % 25
        if ff and ff % 4 == 0: pre.append(f's_add_u32 s{s}, s{s}, 4096')
        L.append((pre, f'buffer_load_dwordx4 {Q(f)}, v{vL16}, {ws()}, s{s} offen offset:{(ff%4)*1024} sc1'))
    return L

def ln0():
    srd(R_A, P_X, ACT); srd(R_B, P_DS, 1280)
    a(f's_mul_i32 s{sA}, s2, 10240')
    for i in range(10):
        if i % 4 == 0:
            a(f's_mov_b32 m0, {LS + i*1024}')
            if i: a(f's_add_u32 s{sA}, s{sA}, 4096')
            else: a('s_nop 0')
        tX = a.vm(f'buffer_load_dwordx4 v{vL16}, s[{R_A}:{R_A+3}], s{sA} offen offset:{(i%4)*1024} lds')
    a(f'v_add_u32 v2, s{sD0}, v0'); a('v_lshlrev_b32 v2, 1, v2'); a('v_mov_b32 v10, 0')
    tD = a.vm(f'buffer_load_short_d16_hi v10, v2, s[{R_B}:{R_B+3}], 0 offen')
    tag_ready()
    a('v_mov_b32 v4, 0'); a('v_mov_b32 v5, 0'); a('v_lshlrev_b32 v3, 3, v0')
    a(f'v_add_u32 v3, {URB + 4096}, v3')
    for ch in range(3): a.ds(f'ds_write_b64 v3, v[4:5] offset:{ch*URS}')
    a('v_lshrrev_b32 v4, 3, v0'); a('v_mul_u32_u24 v4, 1280, v4'); a('v_and_b32 v5, 7, v0')
    a('v_lshlrev_b32 v5, 4, v5')
    a('v_add_u32 v4, v4, v5'); a(f'v_add_u32 v4, {LS}, v4')
    a('v_lshrrev_b32 v5, 2, v0'); a('v_and_b32 v5, 3, v5'); a('v_mul_u32_u24 v5, 1280, v5')
    a('v_lshrrev_b32 v6, 4, v0'); a('v_lshlrev_b32 v6, 5, v6'); a('v_add_u32 v5, v5, v6')
    a('v_and_b32 v6, 3, v0'); a('v_lshlrev_b32 v6, 3, v6'); a('v_add_u32 v5, v5, v6'); a(f'v_add_u32 v5, {LS}, v5')
    a(f's_mov_b32 s{sA+1}, 0x3f803f80')
    a('v_lshrrev_b32 v2, 2, v0'); a('v_and_b32 v3, 3, v0')
    a(f'v_mul_u32_u24 v104, {UTS}, v2'); a(f'v_add_u32 v105, s{sD0}, v3'); a('v_lshlrev_b32 v105, 4, v105'); a('v_add_u32 v104, v104, v105')
    a(f'v_mul_u32_u24 v105, {URS}, v3'); a('v_lshlrev_b32 v2, 4, v2')
    a(f'v_add_u32 v105, {URB + 4080 - 256*15}, v105'); a('v_sub_u32 v105, v105, v2')
    a(f'v_cmp_gt_u32 s[{sU0}:{sU1}], s{sNCH}, v3')
    a('v_lshrrev_b32 v106, 1, v0'); a(f'v_mul_u32_u24 v106, {UTS}, v106'); a('v_and_b32 v2, 1, v0'); a('v_lshlrev_b32 v2, 4, v2')
    a('v_add_u32 v106, v106, v2'); a('v_add_u32 v106, 10240, v106')
    a('v_lshlrev_b32 v107, 7, v0')
    w12_addr(108)
    a.wait_vm(tX)
    toks = [a.ds(f'ds_read_b128 v[{20+4*i}:{23+4*i}], v4 offset:{128*i}') for i in range(10)]
    for c in range(3):
        a.ds(f'ds_read_b64_tr_b16 v[{60+4*c}:{61+4*c}], v5 offset:{128*c}')
        a.ds(f'ds_read_b64_tr_b16 v[{62+4*c}:{63+4*c}], v5 offset:{128*c + 5120}')
    for k in range(4): a(f'v_mov_b32 v{6+k}, 0')
    for i in range(10):
        a.wait_lg(toks[i])
        for k in range(4):
            r = 20 + 4*i + k
            a(f'v_dot2_f32_bf16 v{6+(k&1)}, v{r}, s{sA+1}, v{6+(k&1)}')
            a(f'v_dot2_f32_bf16 v{8+(k&1)}, v{r}, v{r}, v{8+(k&1)}')
        if 3 + i < 10:
            c = 3 + i
            a.ds(f'ds_read_b64_tr_b16 v[{60+4*c}:{61+4*c}], v5 offset:{128*c}')
            a.ds(f'ds_read_b64_tr_b16 v[{62+4*c}:{63+4*c}], v5 offset:{128*c + 5120}')
    a('v_add_f32 v6, v6, v7'); a('v_add_f32 v8, v8, v9')
    for m in ('quad_perm:[1,0,3,2]', 'quad_perm:[2,3,0,1]', 'row_half_mirror'):
        a(f'v_add_f32_dpp v6, v6, v6 {m} row_mask:0xf bank_mask:0xf'); a(f'v_add_f32_dpp v8, v8, v8 {m} row_mask:0xf bank_mask:0xf')
    a(f's_mov_b32 s{sA+2}, 0x3acccccd')
    a(f'v_mul_f32 v6, s{sA+2}, v6'); a(f'v_mul_f32 v8, s{sA+2}, v8')
    a('v_fma_f32 v8, -v6, v6, v8'); a('v_max_f32 v8, 0, v8')
    bf(6, 6); bf(8, 8); a('v_add_f32 v8, 0x3727c5ac, v8'); bf(8, 8); a('v_sqrt_f32 v8, v8')
    a('v_cvt_pk_bf16_f32 v11, v6, v8'); a('v_and_b32 v8, 0xffff0000, v11')
    a('v_rcp_f32 v8, v8'); a('v_mul_f32 v6, v6, v8'); a('v_sub_f32 v6, 0, v6')
    SB = URB + 4608
    a('v_lshrrev_b32 v7, 3, v0'); a('v_lshlrev_b32 v7, 2, v7'); a(f'v_add_u32 v9, {SB}, v7')
    a.ds('ds_write_b32 v9, v8'); a.ds('ds_write_b32 v9, v6 offset:32')
    a(f'v_mov_b32 v9, {SB}')
    for k in range(4): t = a.ds(f'ds_read_b128 v[{20+4*k}:{23+4*k}], v9 offset:{16*k}')
    a(f's_mul_i32 s{sA+2}, s2, {UTS}'); a(f's_add_u32 s{sA+2}, s{sA+2}, {UT}'); a(f's_add_u32 s{sA+3}, s{sA+2}, 10240')
    a(f's_mov_b32 s{sA+4}, 0xffff0000')
    a('s_mov_b32 exec_lo, 0x01010101'); a('s_mov_b32 exec_hi, 0x01010101')
    a.vm(f'buffer_store_dword v11, v7, {ws()}, s{sA+3} offen sc1')
    a('s_mov_b64 exec, -1')
    a.wait_lg(t)
    for c in range(10):
        X = 60 + 4*c; F = 36 + 8*(c & 1); O = 112 + 4*c
        for k in range(4):
            a(f'v_lshlrev_b32 v{F+2*k}, 16, v{X+k}'); a(f'v_and_b32 v{F+2*k+1}, s{sA+4}, v{X+k}')
        for k in range(4):
            a(f'v_pk_fma_f32 v[{F+2*k}:{F+2*k+1}], v[{F+2*k}:{F+2*k+1}], v[{20+2*k}:{21+2*k}], v[{28+2*k}:{29+2*k}]')
        for k in range(4): a(f'v_cvt_pk_f16_f32 v{O+k}, v{F+7-2*k}, v{F+6-2*k}')
        if c and c % 4 == 0: a(f's_add_u32 s{sA+2}, s{sA+2}, 4096')
        a.vm(f'buffer_store_dwordx4 v[{O}:{O+3}], v{vL16}, {ws()}, s{sA+2} offen offset:{(c%4)*1024} sc1')
    a(f's_lshl_b32 s{sA}, s2, 7'); a(f's_add_u32 s{sA}, s{sA}, {FA}')
    a.wait_vm(tD)
    for k in range(3): a(f'v_readlane_b32 s{sA+5+k}, v10, {k}')
    stamp('f1')
    a.wait_all_vm()
    set_flag(sA, 8, val=sFAW)
    for k in range(4): a(f's_mov_b32 s{sA+k}, {FA + 8192*k}')
    stamp('f2')
    poll([(107, sA+k) for k in range(4)], 10, mask=True)
    stamp('f3')
    a(f's_mov_b64 exec, s[{sU0}:{sU1}]')
    a(f's_mov_b32 s{sA}, {UT}')
    tu = []
    for i in range(16):
        tu.append(a.vm(f'buffer_load_dwordx4 v[{20+4*i}:{23+4*i}], v104, {ws()}, s{sA} offen sc1'))
        if i < 15: a(f's_add_u32 s{sA}, s{sA}, {16*UTS}')
    a('s_mov_b64 exec, -1')
    tF = flag_load(2, 108)
    a(f's_mov_b32 s{sA}, {UT}')
    ts = []
    for k in range(8):
        ts.append(a.vm(f'buffer_load_dwordx4 v[{112+4*k}:{115+4*k}], v106, {ws()}, s{sA} offen sc1'))
        if k < 7: a(f's_add_u32 s{sA}, s{sA}, {32*UTS}')
    a(f's_mov_b64 exec, s[{sU0}:{sU1}]')
    for i in range(16):
        a.wait_vm(tu[i]); a.ds(f'ds_write_b128 v105, v[{20+4*i}:{23+4*i}] offset:{256*(15-i)}')
    a('s_mov_b64 exec, -1')
    fa_addr(3); w3_addr(4)
    a('v_lshlrev_b32 v5, 3, v0'); a(f'v_sub_u32 v5, {URB + 4088 - 512*7}, v5')
    a(f'v_add_u32 v6, {WB}, v{vL16}')
    barrier()
    stamp('B1')
    check_or_poll(tF, 2, 108)
    tA = flag_load(7, 3); t3 = flag_load(8, 4)
    wl = wload_list()
    def wl1():
        if wl:
            pre, ld = wl.pop(0)
            for p in pre: a(p)
            a.vm(ld)
    tr = {}
    def rd(n):
        k, ch = divmod(n, 3)
        tr[n] = a.ds(f'ds_read_b64 v[{20+2*(n%6)}:{21+2*(n%6)}], v5 offset:{ch*URS + 512*(7-k)}')
    for n in range(4): rd(n)
    for n in range(24):
        k, ch = divmod(n, 3)
        S_ = 32 + 8*(k & 1); T = 48 + 4*(n % 4); U = 20 + 2*(n % 6)
        if ch == 0:
            a.wait_vm(ts[k])
            for i in range(4): a(f'v_and_b32 v{S_+i}, 0xffff0000, v{112+4*k+i}'); a(f'v_lshlrev_b32 v{S_+4+i}, 16, v{112+4*k+i}')
        for i in range(4): a(f'v_add_f32 v{T+i}, s{sA+5+ch}, v{S_+i}')
        wl1()
        a.wait_lg(tr[n])
        for i in range(4):
            a(f'v_fma_mix_f32 v{T+i}, v{U + (1 - (i >> 1))}, v{T+i}, v{S_+4+i} op_sel:[{1 - (i & 1)},0,0] op_sel_hi:[1,0,0]')
        if n + 4 < 24: rd(n + 4)
        a.ds(f'ds_write_b128 v6, v[{T}:{T+3}] offset:{ch*8192 + 1024*k}')
        wl1()
    barrier()
    while wl: wl1()
    fast_eval(tA, 7); check_or_poll(t3, 8, 4)
    stamp('conv')

def spare():
    a(f's_lshr_b32 s{sU0}, s{sJ}, 1'); a(f's_lshl_b32 s{sU0}, s{sU0}, 3'); a(f's_add_u32 s{sU0}, s{sU0}, s{sX}')
    a(f's_lshr_b32 s{sA+6}, s{sU0}, 6')
    a(f's_cmp_lg_u32 s{sA+6}, 0'); a(f's_cselect_b32 s{R_A}, s{P_W2}, s{P_W1}'); a(f's_cselect_b32 s{R_A+1}, s{P_W2+1}, s{P_W1+1}')
    a(f's_cselect_b32 s{sA+7}, {W2F - W1F}, 0'); a(f's_add_u32 s{sA+7}, s{sA+7}, {W1F}')
    a(f's_mov_b32 s{R_A+2}, 819200'); a(f's_mov_b32 s{R_A+3}, 0x00020000'); srd(R_B, P_W4, 1966080)
    for i in range(5):
        a(f'v_add_u32 v2, {64*i}, v0'); a('v_mul_u32_u24 v3, 205, v2'); a('v_lshrrev_b32 v3, 11, v3')
        a('v_mul_u32_u24 v4, 10, v3'); a('v_sub_u32 v4, v2, v4'); a('v_lshlrev_b32 v4, 4, v4')
        a('v_mul_u32_u24 v3, 1280, v3'); a(f'v_add_u32 v{10+i}, v3, v4')
    a(f's_lshr_b32 s{sA}, s{sU0}, 1'); a(f's_and_b32 s{sA}, s{sA}, 31'); a(f's_and_b32 s{sA+1}, s{sU0}, 1')
    a(f's_mul_i32 s{sA+2}, s{sA}, 25600'); a(f's_add_u32 s{sA+7}, s{sA+7}, s{sA+2}'); a(f's_mul_i32 s{sA+2}, s{sA+1}, 10240')
    a(f's_add_u32 s{sA+7}, s{sA+7}, s{sA+2}')
    a(f's_and_b32 s{sA+2}, s{sA}, 3'); a(f's_mul_i32 s{sA+2}, s{sA+2}, {160*1280}'); a(f's_mul_i32 s{sA+1}, s{sA+1}, {64*1280}')
    a(f's_add_u32 s{sA+2}, s{sA+2}, s{sA+1}'); a(f's_lshr_b32 s{sA}, s{sA}, 2'); a(f's_and_b32 s{sA+5}, s{sA}, 1')
    a(f's_mul_i32 s{sA}, s{sA}, 160'); a(f's_add_u32 s{sA}, s{sA}, s{sA+2}')
    a(f's_lshr_b32 s{sA+1}, s{sU0}, 4'); a(f's_mul_i32 s{sA+1}, s{sA+1}, 160'); a(f's_and_b32 s{sA+2}, s{sU0}, 15')
    a(f's_mul_i32 s{sA+2}, s{sA+2}, {96*1280}'); a(f's_add_u32 s{sA+1}, s{sA+1}, s{sA+2}')
    tg = []
    for R, so, stg in ((R_A, sA, STG1), (R_B, sA+1, STG2)):
        for k in range(3):
            for i in range(5):
                a(f's_mov_b32 m0, {stg + (k*5 + i)*1024}')
                if i == 0 and k: a(f's_add_u32 s{so}, s{so}, {32*1280}')
                else: a('s_nop 0')
                t = a.vm(f'buffer_load_dwordx4 v{10+i}, s[{R}:{R+3}], s{so} offen lds')
        tg.append(t)
    tag_ready()
    a('v_lshrrev_b32 v2, 4, v0'); a('v_lshrrev_b32 v3, 2, v0'); a('v_and_b32 v3, 3, v3'); a('v_and_b32 v4, 3, v0')
    a('v_lshlrev_b32 v2, 2, v2'); a('v_add_u32 v2, v2, v3'); a('v_mul_u32_u24 v2, 160, v2'); a(f'v_add_u32 v2, {STG1}, v2')
    a('v_mul_u32_u24 v3, 40, v4'); a('v_add_u32 v3, v2, v3')
    for jt in range(5): a(f'v_add_u32 v{20+jt}, {8*jt}, v3'); a(f'v_add_u32 v{25+jt}, {8*jt + STG2 - STG1}, v3')
    L = a.newlabel('w1map')
    a(f's_cmp_lg_u32 s{sA+6}, 0'); a(f's_cbranch_scc1 {L}')
    a('v_lshlrev_b32 v4, 3, v4'); a('v_add_u32 v2, v2, v4')
    a(f's_lshl_b32 s{sA+3}, s{sA+5}, 5'); a(f'v_add_u32 v3, s{sA+3}, v2')
    for jt in range(4): a(f'v_add_u32 v{20+jt}, {32*jt}, v3')
    a(f's_lshl_b32 s{sA+3}, s{sA+5}, 7'); a(f's_sub_u32 s{sA+3}, 128, s{sA+3}'); a(f'v_add_u32 v24, s{sA+3}, v2')
    a.label(L)
    w12_addr(16); fa_addr(18); w3_addr(19)
    def unit(steps, va, so):
        f = 0; pend = []; last = [None]
        def flush(upto):
            while len(pend) > upto:
                ff, tok = pend.pop(0)
                a.wait_lg(tok)
                if ff and ff % 4 == 0: a(f's_add_u32 s{so}, s{so}, 4096')
                last[0] = a.vm(f'buffer_store_dwordx4 v[{32+4*ff}:{35+4*ff}], v{vL16}, {ws()}, s{so} offen offset:{(ff%4)*1024} sc1')
        for o1, o2 in steps:
            for jt in range(5):
                a.ds(f'ds_read_b64_tr_b16 v[{32+4*f}:{33+4*f}], v{va+jt} offset:{o1*160}')
                t = a.ds(f'ds_read_b64_tr_b16 v[{34+4*f}:{35+4*f}], v{va+jt} offset:{o2*160}')
                pend.append((f, t)); f += 1
                flush(4)
        flush(0)
        return last[0]
    a.wait_vm(tg[0])
    unit([(0, 16), (32, 48), (64, 80)], 20, sA+7)
    a(f's_lshl_b32 s{sA}, s{sU0}, 7'); a(f's_add_u32 s{sA+4}, s{sA}, {FW4}'); a(f's_add_u32 s{sA}, s{sA}, {FW12}')
    a(f's_mul_i32 s{sA+7}, s{sU0}, 15360'); a(f's_add_u32 s{sA+7}, s{sA+7}, {W4F}')
    stamp('f1')
    a.wait_all_vm()
    set_flag(sA, 2)
    stamp('f2')
    poll([(16, None)], 2)
    stamp('f3')
    barrier()
    stamp('B1')
    tS = unit([(0, 16), (48, 64), (32, 80)], 25, sA+7)
    tA = flag_load(7, 18); t3 = flag_load(8, 19)
    wl = wload_list()
    for pre, ld in wl[:30]:
        for p in pre: a(p)
        a.vm(ld)
    barrier()
    for pre, ld in wl[30:]:
        for p in pre: a(p)
        a.vm(ld)
    fast_eval(tA, 7); check_or_poll(t3, 8, 19)
    set_flag(sA+4, 2)
    stamp('conv')

def kgen():
    sD = sA
    a(f's_add_u32 s{sD}, s{sD0}, s{sW}')
    srd(R_A, P_LA, 245760); srd(R_B, P_AI, 245760); srd(R_C, P_CR, 245760); srd(R_D, P_CI, 245760); srd(R_F, P_W3, 1966080)
    a(f's_mul_i32 s{sA+1}, s{sD}, 384')
    a('v_lshlrev_b32 v1, 2, v0'); a('v_lshlrev_b32 v2, 1, v0')
    for k in range(4): a(f'v_mov_b32 v{8+k}, 0')
    for k, R in enumerate((R_A, R_B, R_C, R_D)):
        a.vm(f'buffer_load_dword v{4+k}, v1, s[{R}:{R+3}], s{sA+1} offen')
        tP = a.vm(f'buffer_load_short_d16_hi v{8+k}, v2, s[{R}:{R+3}], s{sA+1} offen offset:256')
    a(f's_lshl_b32 s{sA+2}, s{sD}, 1'); a(f's_and_b32 s{sA+2}, s{sA+2}, 0xfffffffc')
    a(f's_add_u32 s{sA+4}, s{P_DT}, s{sA+2}'); a(f's_addc_u32 s{sA+5}, s{P_DT+1}, 0')
    a(f's_load_dword s{sA+3}, s[{sA+4}:{sA+5}], 0')
    a(f's_mul_i32 s{sA+6}, s{sW}, {FB}')
    a(f's_mul_i32 s{sU0}, s{sD}, 3277'); a(f's_lshr_b32 s{sU0}, s{sU0}, 16')
    a(f's_mul_i32 s{sU1}, s{sU0}, 20'); a(f's_sub_u32 s{sU1}, s{sD}, s{sU1}')
    a(f's_mul_i32 s{sA+1}, s{sU1}, 52'); a(f's_lshr_b32 s{sA+1}, s{sA+1}, 8')
    a(f's_mul_i32 s{sA+2}, s{sA+1}, 5'); a(f's_sub_u32 s{sA+2}, s{sU1}, s{sA+2}')
    a(f's_mul_i32 s{sA+1}, s{sA+1}, 160')
    a(f's_lshr_b32 s{sA+7}, s{sA+2}, 1'); a(f's_mul_i32 s{sA+7}, s{sA+7}, 80'); a(f's_and_b32 s{sT}, s{sA+2}, 1'); a(f's_lshl_b32 s{sT}, s{sT}, 3')
    a(f's_add_u32 s{sA+7}, s{sA+7}, s{sT}')
    a(f's_cmp_eq_u32 s{sA+2}, 4'); a(f's_cselect_b32 s{sA+7}, 16, s{sA+7}'); a(f's_cselect_b32 s{sA+2}, 20, 1'); a(f's_mul_i32 s{sA+2}, s{sA+2}, {4*3072}')
    a(f's_add_u32 s{sA+1}, s{sA+1}, s{sA+7}'); a(f's_mul_i32 s{sA+1}, s{sA+1}, 3072'); a(f's_mul_i32 s{sT}, s{sU0}, 96'); a(f's_add_u32 s{sA+1}, s{sA+1}, s{sT}')
    a(f's_add_u32 s{sA+7}, s{sA+6}, {49*FROW}')
    for i in range(3):
        a(f'v_add_u32 v12, {64*i}, v0'); a('v_mul_u32_u24 v13, 171, v12'); a('v_lshrrev_b32 v13, 10, v13')
        a('v_mul_u32_u24 v14, 6, v13'); a('v_sub_u32 v12, v12, v14'); a('v_lshlrev_b32 v12, 4, v12')
        a('v_lshrrev_b32 v14, 4, v13'); a(f'v_mul_lo_u32 v14, v14, s{sA+2}'); a('v_add_u32 v12, v12, v14')
        a('v_lshrrev_b32 v14, 2, v13'); a('v_and_b32 v14, 3, v14'); a('v_mul_u32_u24 v14, 20, v14'); a('v_and_b32 v13, 3, v13')
        a('v_add_u32 v13, v13, v14'); a('v_mul_u32_u24 v13, 3072, v13'); a(f'v_add_u32 v{90+i}, v12, v13')
        a(f's_add_u32 m0, s{sA+7}, {1024*i}')
        tW = a.vm(f'buffer_load_dwordx4 v{90+i}, s[{R_F}:{R_F+3}], s{sA+1} offen lds')
    a('v_lshrrev_b32 v93, 2, v0'); a('v_mul_u32_u24 v93, 96, v93'); a('v_and_b32 v12, 3, v0'); a('v_lshlrev_b32 v12, 3, v12')
    a('v_add_u32 v93, v93, v12'); a(f'v_add_u32 v93, s{sA+7}, v93')
    a(f's_mul_i32 s{sU0}, s{sD}, 3072'); a(f's_add_u32 s{sU0}, s{sU0}, {W3F}')
    a(f's_lshl_b32 s{sU1}, s{sD}, 7'); a(f's_add_u32 s{sU1}, s{sU1}, {FW3}')
    a(f's_mov_b32 s{sKC}, 0'); a(f's_cmp_eq_u32 s{sW}, 1'); a(f's_cselect_b32 s{sKC}, {KCS[1]}, s{sKC}')
    a(f's_cmp_eq_u32 s{sW}, 2'); a(f's_cselect_b32 s{sKC}, {KCS[2]}, s{sKC}')
    a(f'v_lshlrev_b32 v2, 3, v0'); a(f'v_add_u32 v2, s{sA+6}, v2')
    a(f'v_add_u32 v1, s{sA+6}, v1'); a('v_add_u32 v1, 512, v1')
    tag_ready()
    a(f's_bitcmp1_b32 s{sD}, 0'); a(f's_cselect_b32 s{sA+2}, 0, 16')
    a(f's_lshl_b32 s{sA+3}, s{sA+3}, s{sA+2}'); a(f's_and_b32 s{sA+3}, s{sA+3}, 0xffff0000')
    LOG2E = '0x3fb8aa3b'
    a(f'v_mov_b32 v3, s{sA+3}'); a(f'v_mul_f32 v3, {LOG2E}, v3'); a('v_exp_f32 v3, v3'); bf(3, 3)
    a(f's_mov_b32 s{sA+4}, 0xffff0000')
    a.wait_vm(tP)
    for k, base, st in ((0, 12, 1), (1, 15, 1), (2, 18, 2), (3, 19, 2)):
        a(f'v_lshlrev_b32 v{base}, 16, v{4+k}'); a(f'v_and_b32 v{base+st}, s{sA+4}, v{4+k}'); a(f'v_mov_b32 v{base+2*st}, v{8+k}')
    for m in range(3): a(f'v_mul_f32 v{12+m}, {LOG2E}, v{12+m}')
    for m in range(3): a(f'v_exp_f32 v{12+m}, v{12+m}')
    for m in range(3): bf(12+m, 12+m)
    a('v_max3_f32 v4, |v18|, |v19|, |v20|'); a('v_max3_f32 v5, |v21|, |v22|, |v23|'); a('v_max_f32 v4, v4, v5')
    for m in ('quad_perm:[1,0,3,2]', 'quad_perm:[2,3,0,1]', 'row_half_mirror', 'row_mirror'):
        a(f'v_max_f32_dpp v4, v4, v4 {m} row_mask:0xf bank_mask:0xf')
    a('v_mov_b32 v5, v4'); a('v_permlane16_swap_b32 v4, v5'); a('v_max_f32 v4, v4, v5')
    a('v_mov_b32 v5, v4'); a('v_permlane32_swap_b32 v4, v5'); a('v_max_f32 v4, v4, v5')
    a('v_frexp_exp_i32_f32 v4, v4')
    a('v_add_f32 v5, v3, v3'); a('v_ldexp_f32 v5, v5, v4'); a('v_sub_u32 v4, 0, v4')
    a(f'v_readfirstlane_b32 s{sYSC}, v5')
    for k in range(6): a(f'v_ldexp_f32 v{18+k}, v{18+k}, v4')
    for m in range(3):
        a(f'v_mul_f32 v{12+m}, v{12+m}, v3'); a(f'v_mul_f32 v{15+m}, v{15+m}, v3')
    for m in range(3):
        a(f'v_mul_f32 v{12+m}, 0xbfb8aa3b, v{12+m}'); a(f'v_mul_f32 v{15+m}, 0.15915494, v{15+m}')
    for (E, t, conj) in ((24, 1.0, 0), (30, 8.0, 1), (36, 256.0, 0)):
        tl = {1.0: '1.0', 8.0: '0x41000000', 256.0: '0x43800000'}[t]
        for m in range(3):
            a(f'v_mul_f32 v{4+m}, {tl}, v{12+m}'); a(f'v_mul_f32 v{8+m}, {tl}, v{15+m}')
        for m in range(3):
            a(f'v_exp_f32 v{4+m}, v{4+m}'); a(f'v_fract_f32 v{8+m}, v{8+m}')
        for m in range(3):
            a(f'v_cos_f32 v{E+2*m}, v{8+m}'); a(f'v_sin_f32 v{E+2*m+1}, v{8+m}')
        for m in range(3):
            a(f'v_mul_f32 v{E+2*m}, v{E+2*m}, v{4+m}')
            a(f'v_mul_f32 v{E+2*m+1}, v{E+2*m+1}, v{4+m}') if not conj else a(f'v_mul_f32_e64 v{E+2*m+1}, -v{E+2*m+1}, v{4+m}')
    TMP = 60
    def cm3(d, x, e):
        for m in range(3): a(f'v_pk_mul_f32 v[{TMP+2*m}:{TMP+2*m+1}], v[{x+2*m}:{x+2*m+1}], v[{e+2*m}:{e+2*m+1}] op_sel_hi:[1,0]')
        for m in range(3): a(f'v_pk_fma_f32 v[{d+2*m}:{d+2*m+1}], v[{x+2*m}:{x+2*m+1}], v[{e+2*m}:{e+2*m+1}], v[{TMP+2*m}:{TMP+2*m+1}] op_sel:[1,1,0] op_sel_hi:[0,1,1] neg_lo:[1,0,0]')
    cnt = [0]
    def row(r, x):
        o = 68 + 4*(cnt[0] % 3); cnt[0] += 1
        for m in range(3): a(f'v_cvt_pk_f16_f32 v{o+m}, v{x+2*m}, v{x+2*m+1}')
        a.ds(f'ds_write_b64 v2, v[{o}:{o+1}] offset:{r*FROW}'); a.ds(f'ds_write_b32 v1, v{o+2} offset:{r*FROW}')
    C, E1, E8, E256, E2, E4, X, G = 18, 24, 30, 36, 42, 48, 54, 80
    row(0, C); cm3(X, C, E1); row(1, X)
    for r in range(2, 8): cm3(X, X, E1); row(r, X)
    cm3(E2, E1, E1); cm3(E4, E2, E2)
    cm3(G, C, E256); row(8, G); cm3(X, G, E2); row(9, X); cm3(X, X, E2); row(10, X); cm3(X, X, E2); row(11, X)
    cm3(G, G, E256); row(12, G); cm3(X, G, E4); row(13, X)
    cm3(G, G, E256); row(14, G); cm3(X, G, E4); row(15, X)
    for r in range(16, 21): cm3(G, G, E256); row(r, G)
    a('v_mov_b32 v86, 0x00003c00'); a('v_mov_b32 v87, 0x00003c00')
    a.ds(f'ds_write_b64 v2, v[86:87] offset:{21*FROW}'); a.ds(f'ds_write_b32 v1, v86 offset:{21*FROW}')
    row(22, E8); cm3(X, E8, E8); row(23, X)
    for r in range(24, 53):
        cm3(X, X, E8); row(r, X)
        if r == 30:
            a.wait_vm(tW)
            for jt in range(3):
                a.ds(f'ds_read_b64_tr_b16 v[{96+4*jt}:{97+4*jt}], v93 offset:{32*jt}')
                t3 = a.ds(f'ds_read_b64_tr_b16 v[{98+4*jt}:{99+4*jt}], v93 offset:{32*jt + 1536}')
        if r == 34:
            a.wait_lg(t3)
            for jt in range(3): a.vm(f'buffer_store_dwordx4 v[{96+4*jt}:{99+4*jt}], v{vL16}, {ws()}, s{sU0} offen offset:{1024*jt} sc1')
    stamp('f1')
    a('v_and_b32 v4, 31, v0'); a(f'v_mul_u32_u24 v4, {FROW}, v4'); a('v_lshrrev_b32 v5, 5, v0'); a('v_lshlrev_b32 v5, 4, v5')
    a('v_add_u32 v4, v4, v5'); a(f'v_add_u32 v4, s{sA+6}, v4')
    NB = 6
    tk = {}
    def rd(st):
        o = 32 + 8*(st % NB)
        a.ds(f'ds_read_b128 v[{o}:{o+3}], v4 offset:{32*st}')
        tk[st] = a.ds(f'ds_read_b128 v[{o+4}:{o+7}], v4 offset:{32*st + 21*FROW}')
    for st in range(NB): rd(st)
    a.wait_all_vm(); set_flag(sU1, 88)
    w12_addr(88); tF = flag_load(90, 88)
    a('v_and_b32 v5, 31, v0'); a('v_lshrrev_b32 v6, 5, v0')
    a(f's_add_u32 s{sA+1}, s{sKC}, {TABO + 16}')
    a('v_lshlrev_b32 v7, 5, v5'); a('v_lshlrev_b32 v8, 4, v6'); a('v_add_u32 v7, v7, v8'); a(f'v_add_u32 v7, s{sA+1}, v7')
    a('v_cmp_eq_u32 vcc, 0, v6')
    a('v_lshlrev_b32 v8, 4, v5'); a('v_add_u32 v8, 1024, v8'); a('v_lshlrev_b32 v9, 3, v5'); a('v_add_u32 v9, 1536, v9')
    a('v_cndmask_b32 v8, v9, v8, vcc'); a(f'v_add_u32 v8, s{sA+1}, v8')
    a('v_mov_b32 v9, 256'); a('v_cndmask_b32 v9, v9, 8, vcc'); a('v_add_u32 v9, v8, v9')
    a('v_lshlrev_b32 v10, 9, v6'); a('v_lshlrev_b32 v11, 2, v5'); a('v_add_u32 v10, v10, v11'); a('v_add_u32 v10, 2048, v10'); a(f'v_add_u32 v10, s{sA+1}, v10')
    a('v_lshlrev_b32 v11, 4, v0'); a(f'v_add_u32 v11, s{sA+1}, v11')
    a('v_lshlrev_b32 v12, 3, v0'); a(f'v_add_u32 v12, s{sA+1}, v12')
    a('v_cmp_eq_u32 vcc, 0, v0'); a('v_mov_b32 v13, 1016'); a('v_mov_b32 v14, 1012'); a('v_cndmask_b32 v13, v13, v14, vcc'); a('v_add_u32 v13, v13, v12')
    a('v_lshlrev_b32 v14, 3, v0'); a(f'v_add_u32 v14, s{sKC}, v14')
    a('v_lshlrev_b32 v15, 4, v0'); a(f'v_add_u32 v15, s{sKC}, v15')
    a('v_lshlrev_b32 v28, 5, v0'); a(f'v_add_u32 v28, s{sKC}, v28')
    a('v_lshrrev_b32 v29, 1, v0'); a('v_and_b32 v29, 3, v29'); a(f'v_mul_u32_u24 v29, {CPS}, v29'); a('v_and_b32 v30, 1, v0'); a('v_lshlrev_b32 v30, 4, v30')
    a('v_add_u32 v29, v29, v30'); a(f'v_add_u32 v29, s{sKC}, v29')
    for k in range(4): a(f'v_mov_b32 v{24+k}, 0')
    a(f'v_mov_b32 v30, s{sA+1}')
    ACC = 94
    for st in range(24):
        o = 32 + 8*(st % NB)
        a.wait_lg(tk[st])
        c = '0' if st == 0 else f'v[{ACC}:{ACC+15}]'
        a(f'v_mfma_f32_32x32x16_f16 v[{ACC}:{ACC+15}], v[{o}:{o+3}], v[{o+4}:{o+7}], {c}')
        if st + NB < 24: rd(st + NB)
    a(f'v_subrev_u32 v30, 16, v30')
    a.ds('ds_write_b128 v30, v[24:27]'); a.ds('ds_write_b128 v29, v[24:27]')
    a.ds(f'ds_write_b64 v7, v[{ACC}:{ACC+1}]'); a.ds(f'ds_write_b64 v7, v[{ACC+2}:{ACC+3}] offset:8')
    a.ds(f'ds_write_b64 v8, v[{ACC+4}:{ACC+5}]'); a.ds(f'ds_write_b64 v9, v[{ACC+6}:{ACC+7}]')
    for c in range(4): a.ds(f'ds_write_b32 v10, v{ACC+8+c} offset:{128*c}')
    a(f'v_subrev_u32 v31, 16, v11')
    t0a = a.ds('ds_read_b128 v[32:35], v31'); t0 = a.ds('ds_read_b128 v[36:39], v11')
    a.ds('ds_read2_b32 v[40:41], v13 offset0:0 offset1:1'); a.ds('ds_read_b32 v42, v13 offset:8')
    a.ds('ds_read_b64 v[44:45], v12 offset:1024'); t1 = a.ds('ds_read_b32 v46, v12 offset:1032')
    a.ds('ds_read2_b32 v[48:49], v13 offset0:129 offset1:130'); a.ds('ds_read_b64 v[50:51], v12 offset:1536'); t2 = a.ds('ds_read_b32 v52, v12 offset:1544')
    a.ds('ds_read_b32 v54, v13 offset:1032'); a.ds('ds_read_b64 v[56:57], v12 offset:2048'); t3 = a.ds('ds_read_b32 v58, v12 offset:2056')
    segs = [(t0, [33, 34, 35, 36, 37, 38, 39], 14, 32),
            (t1, [40, 41, 42, 44, 44, 45, 46], 14, 32 + 512),
            (t2, [48, 49, 50] + [50, 50, 50, 51, 51, 51, 52, 52], 15, 32 + 1024),
            (t3, [54, 56, 56] + [56]*5 + [57]*7 + [58]*4, 28, 32 + 2048)]
    o = 60
    for tok, seq, va, base in segs:
        a.wait_lg(tok)
        n = len(seq) - 3
        for s in range(4):
            el = seq[3 - s: 3 - s + n]
            nd = n // 2
            if o + nd > 88: o = 60
            for k in range(nd): a(f'v_cvt_pk_f16_f32 v{o+k}, v{el[2*k]}, v{el[2*k+1]}')
            if nd == 2: a.ds(f'ds_write_b64 v{va}, v[{o}:{o+1}] offset:{base + s*CPS}')
            else:
                for k in range(0, nd, 4): a.ds(f'ds_write_b128 v{va}, v[{o+k}:{o+k+3}] offset:{base + s*CPS + 4*k}')
            o += nd
    stamp('f2')
    check_or_poll(tF, 90, 88)
    stamp('f3')

def conv():
    ACC = 8; AF = 40; BF = 72
    vA, vB, vW, vO = 104, 105, 106, 107
    a('v_and_b32 v1, 15, v0'); a('v_lshrrev_b32 v2, 4, v0')
    a('v_sub_u32 v3, 15, v1'); a('v_and_b32 v3, 3, v3')
    a(f'v_mul_u32_u24 v4, {CPS}, v3'); a('v_add_u32 v3, v3, v1'); a('v_lshlrev_b32 v5, 3, v2'); a('v_add_u32 v3, v3, v5')
    a('v_add_u32 v3, 1, v3'); a('v_lshlrev_b32 v3, 1, v3'); a('v_add_u32 v3, v3, v4'); a(f'v_add_u32 v{vA}, s{sKC}, v3')
    a(f's_mul_i32 s{sA}, s{sW}, {URS}'); a(f's_add_u32 s{sA}, s{sA}, {URB}')
    a('v_lshlrev_b32 v3, 5, v1'); a('v_lshlrev_b32 v4, 4, v2'); a('v_sub_u32 v5, v4, v3'); a('v_add_u32 v5, 480, v5'); a(f'v_add_u32 v{vB}, s{sA}, v5')
    a(f's_lshl_b32 s{sA}, s{sW}, 13'); a(f's_add_u32 s{sA}, s{sA}, {WB}')
    a('v_lshlrev_b32 v3, 6, v1'); a('v_add_u32 v3, v3, v4'); a(f'v_add_u32 v{vW}, s{sA}, v3')
    a(f's_add_u32 s{sA+1}, s{sD0}, s{sW}'); a(f's_lshr_b32 s{sA+2}, s{sA+1}, 2'); a(f's_and_b32 s{sA+2}, s{sA+2}, 1')
    a(f's_and_b32 s{sA+3}, s{sA+1}, 3'); a(f's_xor_b32 s{sA+2}, s{sA+2}, s{sA+3}')
    a(f's_lshl_b32 s{sA+1}, s{sA+1}, 7'); a(f's_add_u32 s{sA+1}, s{sA+1}, {HT}')
    a('v_lshrrev_b32 v3, 2, v1'); a('v_mul_u32_u24 v3, 81920, v3'); a('v_lshlrev_b32 v4, 3, v2'); a('v_add_u32 v3, v3, v4')
    a('v_and_b32 v4, 3, v1'); a(f'v_xor_b32 v4, s{sA+2}, v4'); a('v_lshlrev_b32 v4, 5, v4'); a(f'v_add_u32 v{vO}, v3, v4')
    fa_addr(3); w3_addr(4)
    barrier()
    stamp('B1')
    tA = {}; tB = {}
    def rdA(rho, jj):
        o = AF + 4*jj
        a.ds(f'ds_read_b64 v[{o}:{o+1}], v{vA} offset:{64*rho + 512*jj}')
        tA[jj] = a.ds(f'ds_read_b64 v[{o+2}:{o+3}], v{vA} offset:{64*rho + 512*jj + 8}')
    def rdB(rho, dl):
        o = BF + 4*dl
        tB[dl] = a.ds(f'ds_read_b128 v[{o}:{o+3}], v{vB} offset:{64*rho + 512*(7-dl)}')
    for k in range(8): rdB(0, k); rdA(0, 7-k)
    tFA = flag_load(5, 3)
    wl = wload_list(); first = set()
    n = 0
    for rho in range(8):
        if rho == OPT['b1b']: a('s_barrier')
        if rho == 5: t3 = flag_load(6, 4)
        for jj in range(7, -1, -1):
            for dl in range(0, 8 - jj):
                I = jj + dl
                a.wait_lg(max(tA[jj], tB[dl]))
                c = f'v[{ACC+4*I}:{ACC+4*I+3}]' if I in first else '0'
                first.add(I)
                a(f'v_mfma_f32_16x16x32_f16 v[{ACC+4*I}:{ACC+4*I+3}], v[{AF+4*jj}:{AF+4*jj+3}], v[{BF+4*dl}:{BF+4*dl+3}], {c}')
                if jj == 0 and rho < 7: rdB(rho + 1, dl)
                elif wl and not (dl == 7 - jj and rho < 7):
                    if n % OPT['wlp'] == 0:
                        pre, ld = wl.pop(0)
                        for p in pre: a(p)
                        a.vm(ld)
                    n += 1
            if rho < 7: rdA(rho + 1, jj)
    assert not wl
    tw = [a.ds(f'ds_read_b128 v[{AF+4*I}:{AF+4*I+3}], v{vW} offset:{1024*I}') for I in range(8)]
    a(f's_mov_b32 s{sA+4}, s{sYSC}'); a(f's_mov_b32 s{sA+5}, s{sYSC}')
    fast_eval(tFA, 5); check_or_poll(t3, 6, 4)
    for I in range(8):
        a.wait_lg(tw[I]); F = AF + 4*I
        for k in range(2):
            a(f'v_pk_fma_f32 v[{F+2*k}:{F+2*k+1}], v[{ACC+4*I+2*k}:{ACC+4*I+2*k+1}], s[{sA+4}:{sA+5}], v[{F+2*k}:{F+2*k+1}]')
        for k in range(2): a(f'v_cvt_pk_bf16_f32 v{BF+2*I+k}, v{F+2*k}, v{F+2*k+1}')
        a.vm(f'buffer_store_dwordx2 v[{BF+2*I}:{BF+2*I+1}], v{vO}, {ws()}, s{sA+1} offen sc1')
        if I < 7: a(f's_add_u32 s{sA+1}, s{sA+1}, 327680')
    stamp('conv')

def reset():
    a.vm_done = a.vm_n; a.lg_done = a.lg_n

def front():
    LN = a.newlabel('ln0'); LP = a.newlabel('pre'); LM = a.newlabel('merge')
    a(f's_cmp_eq_u32 s{sW}, 3'); a(f's_cbranch_scc1 {LN}')
    a(f's_cmp_ge_u32 s{sW}, s{sNCH}'); a(f's_cbranch_scc1 {LP}')
    kgen(); conv(); a(f's_branch {LM}')
    a.label(LP); reset(); spare(); a(f's_branch {LM}')
    a.label(LN); reset(); ln0()
    a.label(LM)
    a.vm_done = -1000; a.lg_done = -1000
```

```python
from common import *
MF = 'v_mfma_f32_16x16x32_bf16'
OA = 8; vRW = 86; vRR = 89; vX1 = 90; vHR = 100; vFL = 111
sTP = 24
sK = 28
K1 = 0xc0135761; K2 = 0xbdd2d3e8
def W3Q(f): return Q(50 + f) if f < 35 else Q(f - 35)
def W4Q(f): return Q(25 + f) if f < 25 else (Q(85 + f - 25) if f < 40 else Q(50 + f - 40))
def wload(dst, s, f):
    if f and f % 4 == 0: a(f's_add_u32 s{s}, s{s}, 4096')
    return a.vm(f'buffer_load_dwordx4 {dst}, v{vL16}, {ws()}, s{s} offen offset:{(f%4)*1024} sc1')
def qreduce(s, q):
    a(f'v_permlane16_swap_b32 v{s}, v{q}'); a(f'v_add_f32 v{s}, v{s}, v{q}')
    a(f'v_mov_b32 v{q}, v{s}'); a(f'v_permlane32_swap_b32 v{s}, v{q}'); a(f'v_add_f32 v{s}, v{s}, v{q}')
    a(f'v_mov_b32 v{q}, v{s}'); a(f'v_permlane16_swap_b32 v{s}, v{q}')
def own_flag(base, tok, vt=2):
    a(f's_lshl_b32 s{sA}, s{sLIN}, 5'); a(f's_add_u32 s{sA}, s{sA}, s{sW}'); a(f's_lshl_b32 s{sA}, s{sA}, 2'); a(f's_add_u32 s{sA}, s{sA}, {base}')
    a.wait_vm(tok)
    set_flag(sA, vt, dual=True)
def units(ns):
    return [(s, p) for s in range(ns - 2) for p in range(4)] + [(s, p) for p in range(4) for s in (ns - 2, ns - 1)]

def window():
    a('s_barrier')
    a(f's_mul_i32 s{sU0}, s{sSL}, 61440'); a(f's_add_u32 s{sU1}, s{sU0}, {W4F}'); a(f's_add_u32 s{sU0}, s{sU0}, {W3F}')
    n0 = a.vm_n
    for f in range(OPT['n3a']): wload(W3Q(f), sU0, f)
    if OPT['warm']:
        a('v_lshlrev_b32 v1, 7, v0')
        a(f's_lshl_b32 s{sA}, s{sRB}, 2'); a(f's_add_u32 s{sA}, s{sA}, s{sW}'); a(f's_lshl_b32 s{sA+2}, s{sA}, 10'); a(f's_mul_i32 s{sA}, s{sA}, 20480')
        a(f's_mul_i32 s{sA+1}, s{sG}, 5120'); a(f's_add_u32 s{sA}, s{sA}, s{sA+1}'); a(f's_add_u32 s{sA+1}, s{sA}, {X1F}'); a(f's_add_u32 s{sA}, s{sA}, {H1F}')
        a(f's_lshl_b32 s{sA+3}, s{sO}, 7'); a(f's_add_u32 s{sA+2}, s{sA+2}, s{sA+3}'); a(f's_add_u32 s{sA+2}, s{sA+2}, {ST}')
        a(f's_lshl_b32 s{sA+3}, s{sLIN}, 7'); a(f's_add_u32 s{sA+3}, s{sA+3}, {F1}')
        a('v_lshlrev_b32 v3, 15, v0')
        a('s_mov_b32 exec_hi, 0xff')
        for k in range(2): a.vm(f'buffer_load_dword v109, v1, s[{R_F}:{R_F+3}], s{sA+k} offen sc1')
        a('s_mov_b64 exec, 1'); a.vm(f'buffer_load_dword v109, v1, s[{R_F}:{R_F+3}], s{sA+2} offen sc1')
        a('s_mov_b64 exec, 7'); a.vm(f'buffer_load_dword v109, v3, s[{R_F}:{R_F+3}], s{sA+3} offen sc1')
        a('s_mov_b64 exec, -1')
    a(f's_lshl_b32 s{sA}, s2, 7'); a(f's_add_u32 s{sA}, s{sA}, {FH}')
    a(f'v_mov_b32 v4, s{sTAG}'); a('v_mov_b32 v5, 0')
    a.vm_done = n0 - 1; a.wait_vm(n0)
    a('s_barrier')
    L = a.newlabel('nofl')
    a(f's_cmp_lg_u32 s{sW}, 0'); a(f's_cbranch_scc1 {L}')
    a('s_mov_b64 exec, 1'); a(f'buffer_store_dword v4, v5, {ws()}, s{sA} offen sc1'); a('s_mov_b64 exec, -1')
    a.label(L)
    stamp('B2')
    for f in range(OPT['n3a'], 35): wload(W3Q(f), sU0, f)
    ONES = 96
    for k in range(4): a(f'v_mov_b32 v{ONES+k}, 0x3f803f80')
    for s in range(5):
        for jt in range(5): a(f'{MF} {V4(OA+4*jt)}, {Q(5*s+jt)}, {V4(ONES)}, {"0" if s == 0 else V4(OA+4*jt)}')
    for p in range(4): a(f's_add_u32 s{sTP+p}, s{sW}, {p+1}'); a(f's_and_b32 s{sTP+p}, s{sTP+p}, 3')
    a('v_lshrrev_b32 v3, 4, v0'); a('v_lshlrev_b32 v4, 4, v3'); a(f'v_add_u32 v4, {CSP}, v4')
    a(f's_mul_i32 s{sA}, s{sW}, 320'); a(f'v_add_u32 v85, s{sA}, v4')
    a('s_mov_b32 exec_lo, 0x00010001'); a('s_mov_b32 exec_hi, 0x00010001')
    for jt in range(5): a.ds(f'ds_write_b128 v85, {V4(OA+4*jt)} offset:{64*jt}')
    a('s_mov_b64 exec, -1')
    for p in range(3):
        a(f's_mul_i32 s{sA}, s{sTP+p}, 15360'); a(f's_add_u32 s{sA}, s{sA}, {RED + 5120*p}'); a(f'v_add_u32 v{vRW+p}, s{sA}, v{vL16}')
    a(f's_mul_i32 s{sA}, s{sW}, 15360'); a(f's_add_u32 s{sA}, s{sA}, {RED}'); a(f'v_add_u32 v{vRR}, s{sA}, v{vL16}')
    a(f'v_and_b32 v5, 3, v0'); a('v_lshlrev_b32 v6, 2, v5'); a('v_and_b32 v7, 4, v0'); a('v_lshlrev_b32 v7, 5, v7'); a(f'v_add_u32 v{vFL}, v6, v7')
    a(f's_lshl_b32 s{sA}, s{sRB}, 2'); a(f's_add_u32 s{sA}, s{sA}, s{sW}'); a(f's_lshl_b32 s{sA}, s{sA}, 8'); a(f'v_add_u32 v{vFL}, s{sA}, v{vFL}')
    barrier()
    stamp('B3')
    R = [196, 216, 236, 28]
    tk = []
    for jt in range(5):
        for k in range(4): t = a.ds(f'ds_read_b128 {V4(R[k]+4*jt)}, v4 offset:{320*k + 64*jt}')
        tk.append(t)
    a('v_lshrrev_b32 v6, 2, v0'); a('v_lshlrev_b32 v7, 7, v6'); a('v_lshlrev_b32 v5, 3, v5'); a('v_add_u32 v7, v7, v5')
    a('v_and_b32 v6, 3, v6'); a('v_and_b32 v2, 1, v3'); a('v_xor_b32 v2, v2, v6'); a('v_lshlrev_b32 v2, 5, v2')
    a('v_add_u32 v7, v7, v2'); a(f's_mul_i32 s{sA}, s{sW}, 20480'); a(f'v_add_u32 v7, s{sA}, v7')
    for p in range(4): a(f's_lshl_b32 s{sA+1}, s{sTP+p}, 5'); a(f'v_xor_b32 v{90+p}, s{sA+1}, v7')
    a('v_mul_u32_u24 v3, 20, v3'); a('v_add_u32 v3, v3, v6'); a('v_lshlrev_b32 v3, 7, v3'); a('v_add_u32 v3, v3, v5'); a('v_add_u32 v3, v3, v2')
    a(f's_mul_i32 s{sA}, s{sO}, 10240'); a(f'v_add_u32 v3, s{sA}, v3'); a(f's_lshl_b32 s{sA+1}, s{sW}, 5'); a(f'v_xor_b32 v94, s{sA+1}, v3'); a('v_xor_b32 v95, 32, v94')
    a('v_and_b32 v84, 15, v0'); a('v_lshlrev_b32 v84, 5, v84'); a(f'v_add_u32 v84, {STX}, v84')
    for jt in range(5):
        a.wait_lg(tk[jt])
        for k in range(2):
            r = 4*jt + 2*k
            a(f'v_pk_add_f32 {V2(R[0]+r)}, {V2(R[0]+r)}, {V2(R[1]+r)}'); a(f'v_pk_add_f32 {V2(R[2]+r)}, {V2(R[2]+r)}, {V2(R[3]+r)}')
        for k in range(2):
            r = 4*jt + 2*k
            a(f'v_pk_add_f32 {V2(R[0]+r)}, {V2(R[0]+r)}, {V2(R[2]+r)}')
    a('s_mov_b32 exec_lo, 0x00010001'); a('s_mov_b32 exec_hi, 0x00010001')
    for jt in range(5): a.ds(f'ds_write_b128 v85, {V4(R[0]+4*jt)} offset:{CST - CSP + 64*jt}')
    a('s_mov_b64 exec, -1')
    a('v_lshrrev_b32 v1, 1, v0'); a('v_lshlrev_b32 v1, 3, v1'); a('v_and_b32 v2, 1, v0'); a('v_add_u32 v1, v1, v2')
    a(f's_lshl_b32 s{sA}, s{sW}, 1'); a(f'v_add_u32 v1, s{sA}, v1'); a('v_lshlrev_b32 v1, 7, v1')
    a('v_and_b32 v2, 3, v0'); a('v_lshlrev_b32 v2, 7, v2')
    a(f's_mov_b32 s{sA}, {FH}'); a(f's_lshl_b32 s{sA+1}, s{sSL}, 9'); a(f's_add_u32 s{sA+1}, s{sA+1}, {FW4}')
    a(f's_mul_i32 s{sA+2}, s{sRB}, 81920'); a(f's_mul_i32 s{sA+3}, s{sW}, 20480'); a(f's_add_u32 s{sA+2}, s{sA+2}, s{sA+3}'); a(f's_add_u32 s{sA+2}, s{sA+2}, {HT}')
    a(f's_mov_b32 m0, s{sA+3}')
    a(f's_mov_b32 s{sK}, 0x22222222'); a(f's_mov_b32 s{sK+1}, s{sK}'); a(f's_mov_b32 s{sK+2}, 0x44444444'); a(f's_mov_b32 s{sK+3}, s{sK+2}')
    a(f's_mov_b32 s{sK+4}, 0x88888888'); a(f's_mov_b32 s{sK+5}, s{sK+4}'); a(f's_mov_b32 s{sK+6}, 0x00f0000f'); a(f's_mov_b32 s{sK+7}, 0xf0000f00')
    poll([(1, sA), (2, sA+1)], 3)
    stamp('FH')

def epoch_write():
    L = a.newlabel('noep')
    a(f's_or_b32 s{sT}, s2, s{sW}'); a(f's_cmp_lg_u32 s{sT}, 0'); a(f's_cbranch_scc1 {L}')
    set_flag(sT, 2)
    a.label(L)

def g1():
    ONES = 96; GR = 28; SM = 44; BR = 60; NB = 6; LA = 4; vB = 90
    tD = {}
    for i in range(20):
        if i and i % 4 == 0: a(f's_add_u32 s{sA+2}, s{sA+2}, 4096'); a('s_add_u32 m0, m0, 4096')
        tD[i//4] = a.vm(f'buffer_load_dwordx4 v{vL16}, {ws()}, s{sA+2} offen offset:{(i%4)*1024} sc1 lds')
    U = units(5); tB = {}
    def rdB(n):
        s, p = U[n]; o = BR + 4*(n % NB)
        a.wait_vm(tD[s])
        a.ds(f'ds_read_b64_tr_b16 {V2(o)}, v{vB+p} offset:{4096*s}')
        tB[n] = a.ds(f'ds_read_b64_tr_b16 {V2(o+2)}, v{vB+p} offset:{4096*s + 2048}')
    def acc(p, jt): return V4(OA + 4*jt) if p == 3 else Q(85 + 5*p + jt)
    def stat_out(p):
        x = SM + 4*p + 1; g = GR + 4*p
        return [f'v_cndmask_b32_e64 v{x}, v{g}, v{g+1}, s[{sK}:{sK+1}]', f'v_cndmask_b32_e64 v{g+2}, v{g+2}, v{g+3}, s[{sK+4}:{sK+5}]',
                f's_lshl_b32 s{sA}, s{sTP+p}, 9', f's_lshl_b32 s{sA+1}, s{sW}, 3', f's_add_u32 s{sA}, s{sA}, s{sA+1}',
                f's_or_b64 vcc, s[{sK+2}:{sK+3}], s[{sK+4}:{sK+5}]', f'v_add_u32 v{g}, s{sA}, v84',
                f'v_cndmask_b32 v{x}, v{x}, v{g+2}, vcc',
                f's_mov_b64 exec, s[{sK+6}:{sK+7}]', f'ds_write_b64 v{g}, {V2(x-1)}', 's_mov_b64 exec, -1']
    for n in range(LA): rdB(n)
    stamp('g1d0')
    fill = []
    for n, (s, p) in enumerate(U):
        o = BR + 4*(n % NB)
        a.wait_lg(tB[n])
        ms = [f'{MF} {V4(GR+4*p)}, {V4(o)}, {V4(o)}, {"0" if s == 0 else V4(GR+4*p)}',
              f'{MF} {V4(SM+4*p)}, {V4(ONES)}, {V4(o)}, {"0" if s == 0 else V4(SM+4*p)}']
        ms += [f'{MF} {acc(p, jt)}, {Q(5*s+jt)}, {V4(o)}, {"0" if s == 0 else acc(p, jt)}' for jt in range(5)]
        for i, m in enumerate(ms):
            a(m)
            if i == 0 and n + LA < len(U): rdB(n + LA)
            if p == 3 and i >= 2: wload(Q(5*s+i-2), sU0, 35 + 5*s + i - 2)
            if i >= 2 and fill:
                x = fill.pop(0)
                for y in (x if isinstance(x, list) else [x]): a(y)
            if s == 4 and p == 3 and i == 4:
                for y in stat_out(3): a(y)
        if s == 4 and p < 3:
            fill = [stat_out(p)] + [f'ds_write_b128 v{vRW+p}, {acc(p, jt)} offset:{1024*jt}' for jt in range(5)]
    assert not fill
    stamp('g1loop')
    CS = 60
    tc = [a.ds(f'ds_read_b128 {V4(CS+4*jt)}, v85 offset:{CST - CSP + 64*jt}') for jt in range(5)]
    a(f's_lshl_b32 s{sA}, s{sW}, 9'); a(f'v_add_u32 v84, s{sA}, v84')
    barrier()
    stamp('B5')
    a.ds(f'ds_read_b128 v[28:31], v84'); ts = a.ds(f'ds_read_b128 v[32:35], v84 offset:16')
    P = [196, 216, 236]; tp = []
    for jt in range(5):
        for k in range(3): t = a.ds(f'ds_read_b128 {V4(P[k]+4*jt)}, v{vRR} offset:{5120*k + 1024*jt}')
        tp.append(t)
    epoch_write()
    a.wait_lg(ts)
    a('v_pk_add_f32 v[28:29], v[28:29], v[30:31]'); a('v_pk_add_f32 v[32:33], v[32:33], v[34:35]'); a(f's_mov_b32 s{sA+1}, 0x3acccccd')
    a('v_pk_add_f32 v[28:29], v[28:29], v[32:33]')
    S_, Q_ = 28, 29
    a(f'v_mul_f32 v{S_}, s{sA+1}, v{S_}'); a(f'v_mul_f32 v{Q_}, s{sA+1}, v{Q_}')
    a(f'v_fma_f32 v{Q_}, -v{S_}, v{S_}, v{Q_}'); a(f'v_max_f32 v{Q_}, 0, v{Q_}')
    a(f'v_cvt_pk_bf16_f32 v30, v{S_}, v{Q_}'); a('v_and_b32 v31, 0xffff0000, v30'); a('v_lshlrev_b32 v30, 16, v30')
    a('v_add_f32 v31, 0x3727c5ac, v31'); bf(31, 31); a('v_sqrt_f32 v31, v31'); bf(31, 31)
    vI = 6
    a(f'v_rcp_f32 v{vI}, v31'); a(f'v_sub_f32 v{S_}, v{S_}, v30'); a(f'v_mul_f32 v{Q_}, v{Q_}, v{vI}'); a(f'v_mul_f32 v{S_}, v{S_}, v{vI}')
    a(f'v_mul_f32 v{Q_}, v{Q_}, v{vI}')
    a(f'v_cvt_pk_bf16_f32 v{S_}, v{S_}, v{Q_}'); a(f'v_and_b32 v{Q_}, 0xffff0000, v{S_}'); a(f'v_lshlrev_b32 v{S_}, 16, v{S_}')
    a(f'v_add_f32 v{Q_}, 0x3727c5ac, v{Q_}'); bf(Q_, Q_); a(f'v_sqrt_f32 v{Q_}, v{Q_}'); bf(Q_, Q_)
    for jt in range(5): th = a.ds(f'ds_read_b64_tr_b16 {V2(vHR+2*jt)}, v{94+(jt&1)} offset:{512*jt}')
    a(f'v_mul_f32_e64 v{vI+1}, -v30, v{vI}')
    a(f'v_fma_f32 v32, -v{S_}, v31, -v30')
    a(f'v_mul_f32 v33, v{Q_}, v31')
    a('v_rcp_f32 v34, v33')
    a('v_mul_f32 v35, v34, v34'); a(f'v_mul_f32 v35, {hex(K2)}, v35'); a('v_mul_f32 v35, v35, v34'); a(f'v_mul_f32 v34, {hex(K1)}, v34')
    for jt in range(5):
        a.wait_lg(tp[jt])
        for k in range(2):
            r = 4*jt + 2*k
            a(f'v_pk_add_f32 {V2(P[0]+r)}, {V2(P[0]+r)}, {V2(P[1]+r)}'); a(f'v_pk_add_f32 {V2(OA+r)}, {V2(OA+r)}, {V2(P[2]+r)}')
        for k in range(2):
            r = 4*jt + 2*k
            a(f'v_pk_fma_f32 {V2(P[0]+r)}, {V2(CS+r)}, v[32:33], {V2(P[0]+r)} op_sel_hi:[1,0,1]')
        for k in range(2):
            r = 4*jt + 2*k
            a(f'v_pk_add_f32 {V2(OA+r)}, {V2(OA+r)}, {V2(P[0]+r)}')
    a.wait_lg(th); a('s_barrier')
    T = 60; O = 48
    Z = [OA + 2*k for k in range(10)]; TT = [T + 2*k for k in range(10)]
    for z, t in zip(Z, TT): a(f'v_pk_mul_f32 {V2(t)}, {V2(z)}, {V2(z)}')
    for z, t in zip(Z, TT): a(f'v_pk_fma_f32 {V2(t)}, {V2(t)}, v[34:35], v[34:35] op_sel:[0,1,0] op_sel_hi:[1,1,0]')
    for z, t in zip(Z, TT): a(f'v_pk_mul_f32 {V2(t)}, {V2(t)}, {V2(z)}')
    for z, t in zip(Z, TT): a(f'v_exp_f32 v{t}, v{t}'); a(f'v_exp_f32 v{t+1}, v{t+1}')
    for z, t in zip(Z, TT): a(f'v_pk_fma_f32 {V2(t)}, {V2(t)}, v[32:33], v[32:33] op_sel:[0,1,1] op_sel_hi:[1,1,1]')
    for z, t in zip(Z, TT): a(f'v_rcp_f32 v{t}, v{t}'); a(f'v_rcp_f32 v{t+1}, v{t+1}')
    a(f's_lshl_b32 s{sA}, s{sRB}, 2'); a(f's_add_u32 s{sA}, s{sA}, s{sW}'); a(f's_mul_i32 s{sA}, s{sA}, 20480')
    a(f's_mul_i32 s{sA+1}, s{sG}, 5120'); a(f's_add_u32 s{sK+8}, s{sA}, s{sA+1}')
    a(f's_add_u32 s{sA}, s{sK+8}, {H1F}')
    a(f's_mul_i32 s{sA+1}, s{sE}, 3072'); a(f's_add_u32 s{sA+1}, s{sA+1}, s{sA}')
    a(f's_lshl_b32 s{sA+2}, s{sE}, 3'); a(f's_add_u32 s{sA+2}, s{sA+2}, s{sA}')
    a(f's_lshl_b32 s{sA+3}, s{sLIN}, 9'); a(f's_add_u32 s{sA+3}, s{sA+3}, {HALO}')
    a(f's_mov_b32 s{sA+4}, 0xc000c000'); a(f's_bitcmp1_b32 s{sG}, 0'); a(f's_cselect_b32 s{sA+4}, 0x00030003, s{sA+4}'); a(f's_cselect_b32 s{sA+5}, 0, 3')
    a('v_lshrrev_b32 v1, 4, v0'); a('v_lshlrev_b32 v1, 5, v1'); a('v_and_b32 v2, 1, v0'); a('v_lshlrev_b32 v2, 4, v2')
    a(f's_cmp_eq_u32 s{sW}, s{sA+5}'); a(f's_cselect_b32 s{sA+5}, 0, 0x80000000'); a(f'v_add3_u32 v1, v1, v2, s{sA+5}')
    for z, t in zip(Z, TT): a(f'v_pk_mul_f32 {V2(t)}, {V2(t)}, {V2(z)}')
    for k, t in enumerate(TT): a(f'v_cvt_pk_bf16_f32 v{O+k}, v{t}, v{t+1}')
    store2(f'buffer_store_dwordx4 {V4(O)}, v{vL16}', f's{sA+1} offen')
    store2(f'buffer_store_dwordx4 {V4(O+4)}, v{vL16}', f's{sA+1} offen offset:1024')
    t = store2(f'buffer_store_dwordx2 {V2(O+8)}, v{vL16}', f's{sA+2} offen offset:2048')
    a(f'v_mov_b32 v60, v{O+3}'); a(f'v_mov_b32 v61, v{O+7}'); a(f'v_mov_b32 v63, s{sTAG}')
    a(f'v_mov_b32 v{O+11}, s{sTAG}'); a(f'v_mov_b32 v{O+3}, s{sTAG}'); a(f'v_mov_b32 v{O+7}, s{sTAG}')
    a(f's_mov_b32 exec_lo, s{sA+4}'); a(f's_mov_b32 exec_hi, s{sA+4}')
    for k in range(4): a.vm(f'buffer_store_dwordx4 {V4(O+4*k)}, v1, {ws()}, s{sA+3} offen offset:{128*k} sc1')
    a('s_mov_b64 exec, -1')
    stamp('g1st')
    return t

def g2(tok):
    BR = 28; NB = 8; LA = 4; vB = 60; HG = 64
    a(f's_mov_b32 s{sA+1}, 0xffff0000')
    for k in range(10): a(f'v_lshlrev_b32 v{OA+2*k}, 16, v{vHR+k}'); a(f'v_and_b32 v{OA+2*k+1}, s{sA+1}, v{vHR+k}')
    for k in range(10): a(f'v_pk_fma_f32 {V2(OA+2*k)}, {V2(OA+2*k)}, v[6:7], v[6:7] op_sel:[0,0,1] op_sel_hi:[1,0,1]')
    own_flag(F1, tok)
    stamp('g1end')
    a(f's_mov_b32 s{sA}, {F1}')
    def between():
        a(f's_lshr_b32 s{sA+1}, s{sW}, 1'); a(f's_add_u32 s{sA+1}, s{sA+1}, 1')
        a(f's_sub_u32 s{sA+2}, 16, s{sA+1}'); a(f's_add_u32 s{sA+3}, 16, s{sA+1}')
        a(f's_lshl_b32 s{sA+4}, 1, s{sA+1}'); a(f's_sub_u32 s{sA+4}, s{sA+4}, 1')
        a(f's_lshl_b32 s{sA+5}, s{sA+4}, s{sA+2}')
        a(f's_mul_i32 s{sA+4}, s{sA+4}, 0x10001'); a(f's_mul_i32 s{sA+5}, s{sA+5}, 0x10001')
        a(f's_not_b32 s{sA+4}, s{sA+4}'); a(f's_not_b32 s{sA+5}, s{sA+5}')
        a(f's_bitcmp1_b32 s{sW}, 0')
        a(f's_cselect_b32 s{sA+3}, s{sA+3}, s{sA+2}')
        a(f's_cselect_b32 s{sK+4}, -1, s{sA+4}'); a(f's_cselect_b32 s{sK+6}, s{sA+5}, -1')
        a(f's_cselect_b32 s{sA+4}, 1, -1'); a(f's_cselect_b32 s{sA+5}, {3*5120}, 0')
        a(f's_mov_b32 s{sA+6}, 0xaaaa'); a(f's_cselect_b32 s{sA+6}, 0x5555, s{sA+6}')
        a(f's_cselect_b32 s{sA+7}, s{sA+2}, s{sA+1}'); a(f's_cselect_b32 s{sT}, 0, 2'); a(f's_sub_u32 s{sA+7}, s{sA+7}, s{sT}')
        a(f's_mov_b32 s{sK+5}, s{sK+4}'); a(f's_mov_b32 s{sK+7}, s{sK+6}')
        a(f's_cmp_ge_u32 s{sW}, 2'); a(f's_cselect_b32 s{sK+10}, 0xffff, s{sA+6}'); a(f's_mov_b32 s{sK+11}, 0')
        a('v_and_b32 v3, 15, v0'); a(f'v_add_u32 v3, s{sA+3}, v3'); a('v_lshrrev_b32 v4, 4, v3'); a('v_mul_u32_u24 v4, 20480, v4')
        a('v_and_b32 v3, 15, v3'); a('v_lshlrev_b32 v3, 4, v3'); a('v_lshrrev_b32 v5, 4, v0'); a('v_lshlrev_b32 v5, 8, v5'); a('v_add3_u32 v3, v3, v4, v5')
        a(f's_mul_i32 s{sA+1}, s{sRB}, 81920'); a(f's_mul_i32 s{sA+2}, s{sW}, 5120'); a(f's_add_u32 s{sA+1}, s{sA+1}, s{sA+2}')
        for T in range(4): a(f's_add_u32 s{sK+T}, s{sA+1}, {H1F - 20480 + 20480*T}')
        a(f's_mul_i32 s{sK+9}, s{sW}, 20480')
        for p in range(4):
            a(f's_mul_i32 s{sA+1}, s{sTP+p}, 5120'); a(f's_add_u32 s{sA+1}, s{sA+1}, s{sK+9}'); a(f'v_add_u32 v{vB+p}, s{sA+1}, v{vL16}')
        a(f's_add_u32 s{sA+4}, s{sRB}, s{sA+4}'); a(f's_cmp_lt_u32 s{sA+4}, 32'); a(f's_cselect_b32 s{sA+6}, s{sTAG}, 0'); a(f's_cselect_b32 s{sA+1}, 0, 0x80000000')
        a(f's_lshl_b32 s{sA+4}, s{sA+4}, 2'); a(f's_add_u32 s{sA+4}, s{sA+4}, s{sW}'); a(f's_lshl_b32 s{sA+4}, s{sA+4}, 10'); a(f's_add_u32 s{sA+4}, s{sA+4}, {HALO}')
        a(f's_and_b32 s{sA+4}, s{sA+4}, 0xffffff'); a(f's_or_b32 s{sA+4}, s{sA+4}, s{sA+1}')
        a('v_and_b32 v4, 7, v0'); a('v_lshlrev_b32 v4, 4, v4'); a('v_and_b32 v5, 8, v0'); a('v_lshlrev_b32 v84, 6, v5'); a('v_add_u32 v4, v4, v84'); a(f'v_add_u32 v4, s{sA+4}, v4')
        a('v_lshrrev_b32 v84, 1, v0'); a('v_and_b32 v84, 3, v84'); a('v_lshlrev_b32 v84, 4, v84'); a('v_and_b32 v85, 1, v0'); a('v_add_u32 v84, v84, v85')
        a(f'v_add_u32 v84, s{sA+7}, v84'); a('v_lshlrev_b32 v84, 4, v84'); a(f's_add_u32 s{sA+5}, s{sA+5}, s{sK+9}'); a(f'v_add_u32 v84, s{sA+5}, v84')
        a('v_add_u32 v85, v84, v5'); a('v_mul_u32_u24 v5, 384, v5'); a('v_add_u32 v84, v84, v5')
    poll([(vFL, sA)], 1, between=between)
    stamp('F1')
    tD = {}
    def hload():
        for k in range(4): t = a.vm(f'buffer_load_dwordx4 {V4(HG+4*k)}, v4, {ws()}, 0 offen offset:{128*k} sc1')
        return t
    for s in range(5):
        for T in range(4):
            a(f's_add_u32 m0, s{sK+9}, {5120*T + (4096 if s == 4 else 0)}')
            if s == 4: a(f's_add_u32 s{sK+T}, s{sK+T}, 4096')
            if T == 0: a(f's_mov_b64 exec, s[{sK+4}:{sK+5}]')
            elif T == 1: a('s_mov_b64 exec, -1')
            elif T == 3: a(f's_mov_b64 exec, s[{sK+6}:{sK+7}]')
            else: a('s_nop 0')
            tD[s] = a.vm(f'buffer_load_dwordx4 v3, {ws()}, s{sK+T} offen offset:{(s%4)*1024} sc1 lds')
        if s == 0: a('s_mov_b64 exec, -1'); tH = hload()
    a('s_mov_b64 exec, -1')
    LH = a.newlabel('hchk'); LO = a.newlabel('hok')
    a(f's_mov_b32 s{sCNT}, 0x20000')
    a.wait_vm(tH)
    a.label(LH)
    for k in range(4): a(f'v_xor_b32 v{HG+4*k+3}, s{sA+6}, v{HG+4*k+3}')
    a(f'v_or3_b32 v{HG+3}, v{HG+3}, v{HG+7}, v{HG+11}'); a(f'v_or_b32 v{HG+3}, v{HG+3}, v{HG+15}')
    a(f'v_cmp_ne_u32 vcc, 0, v{HG+3}'); a('s_nop 1'); a(f's_cbranch_vccz {LO}')
    sv = (a.vm_n, a.vm_done)
    a(f's_sub_u32 s{sCNT}, s{sCNT}, 1'); a('s_cbranch_scc1 END')
    hload(); a.wait_all_vm(); a(f's_branch {LH}')
    a.vm_n, a.vm_done = sv
    a.label(LO)
    a(f'v_mov_b32 v{HG+3}, v{HG+12}'); a(f'v_mov_b32 v{HG+7}, v{HG+13}')
    a(f's_mov_b64 exec, s[{sK+10}:{sK+11}]')
    a.ds(f'ds_write_b128 v84, {V4(HG)}'); a.ds(f'ds_write_b128 v84, {V4(HG+4)} offset:1024'); a.ds(f'ds_write_b64 v85, {V2(HG+8)} offset:2048')
    a('s_mov_b64 exec, -1')
    stamp('g2h')
    U = units(5); tB = {}
    def rdB(n):
        s, p = U[n]; o = BR + 4*(n % NB)
        a.wait_vm(tD[s])
        tB[n] = a.ds(f'ds_read_b128 {V4(o)}, v{vB+p} offset:{1024*s}')
    def acc(p, jt): return V4(OA + 4*jt) if p == 3 else Q(85 + 5*p + jt)
    for n in range(LA): rdB(n)
    fill = []
    for n, (s, p) in enumerate(U):
        o = BR + 4*(n % NB)
        a.wait_lg(tB[n])
        for jt in range(5):
            a(f'{MF} {acc(p, jt)}, {Q(25+5*s+jt)}, {V4(o)}, {"0" if (s == 0 and p < 3) else acc(p, jt)}')
            if jt == 0 and n + LA < len(U): rdB(n + LA)
            if p == 3: wload(W4Q(5*s+jt), sU1, 5*s + jt)
            if jt >= 1 and fill: a(fill.pop(0))
        if s == 4 and p < 3:
            fill = [f'ds_write_b128 v{vRW+p}, {acc(p, jt)} offset:{1024*jt}' for jt in range(5)]
    assert not fill
    stamp('g2loop')
    a(f's_add_u32 s{sA}, s{sK+8}, {X1F}')
    a(f's_lshl_b32 s{sA+1}, s{sE}, 11'); a(f's_add_u32 s{sA+1}, s{sA+1}, s{sA}')
    a(f's_lshl_b32 s{sA+2}, s{sE}, 3'); a(f's_add_u32 s{sA+2}, s{sA+2}, s{sA}'); a(f's_add_u32 s{sA+2}, s{sA+2}, 4096')
    a(f's_lshl_b32 s{sA+3}, s{sRB}, 2'); a(f's_add_u32 s{sA+3}, s{sA+3}, s{sW}'); a(f's_lshl_b32 s{sA+3}, s{sA+3}, 3'); a(f's_add_u32 s{sA+3}, s{sA+3}, s{sO}')
    a(f's_lshl_b32 s{sA+3}, s{sA+3}, 7'); a(f's_add_u32 s{sA+3}, s{sA+3}, {ST}')
    a('v_mov_b32 v1, 0x3f803f80'); a('v_and_b32 v6, 15, v0'); a('v_lshlrev_b32 v6, 3, v6')
    for k in range(4): a(f'v_mov_b32 v{2+k}, 0')
    barrier()
    stamp('B7')
    P = [196, 216, 236]; tp = []
    for jt in range(5):
        for k in range(3): t = a.ds(f'ds_read_b128 {V4(P[k]+4*jt)}, v{vRR} offset:{5120*k + 1024*jt}')
        tp.append(t)
    for jt in range(5):
        a.wait_lg(tp[jt])
        for k in range(2):
            r = 4*jt + 2*k
            a(f'v_pk_add_f32 {V2(P[0]+r)}, {V2(P[0]+r)}, {V2(P[1]+r)}'); a(f'v_pk_add_f32 {V2(OA+r)}, {V2(OA+r)}, {V2(P[2]+r)}')
        for k in range(2):
            r = 4*jt + 2*k
            a(f'v_pk_add_f32 {V2(OA+r)}, {V2(OA+r)}, {V2(P[0]+r)}')
        for k in range(2): a(f'v_cvt_pk_bf16_f32 v{vX1+2*jt+k}, v{OA+4*jt+2*k}, v{OA+4*jt+2*k+1}')
        for k in range(2):
            r = vX1 + 2*jt + k
            a(f'v_dot2_f32_bf16 v{2+2*k}, v{r}, v1, v{2+2*k}'); a(f'v_dot2_f32_bf16 v{3+2*k}, v{r}, v{r}, v{3+2*k}')
        if jt == 1: store2(f'buffer_store_dwordx4 {V4(vX1)}, v{vL16}', f's{sA+1} offen')
        if jt == 3: store2(f'buffer_store_dwordx4 {V4(vX1+4)}, v{vL16}', f's{sA+1} offen offset:1024')
        if jt == 4: store2(f'buffer_store_dwordx2 {V2(vX1+8)}, v{vL16}', f's{sA+2} offen')
    a('v_pk_add_f32 v[2:3], v[2:3], v[4:5]')
    qreduce(2, 3)
    a('s_mov_b64 exec, 0xffff')
    t = store2('buffer_store_dwordx2 v[2:3], v6', f's{sA+3} offen')
    a('s_mov_b64 exec, -1')
    stamp('g2st')
    return t

def g3(tok):
    AC = [8, 20]; CS = 32; BR = 44; NB = 6; LA = 5; SR = 68; vB = 85
    STB = STX + 4096
    for k in range(4): a(f'v_mov_b32 v{BR+k}, 0x3f803f80')
    def colsum(s0, s1):
        for s in range(s0, s1):
            for jt in range(3): a(f'{MF} {V4(CS+4*jt)}, {W3Q(3*s+jt)}, {V4(BR)}, {"0" if s == 0 else V4(CS+4*jt)}')
    colsum(0, 8)
    own_flag(F2, tok, 4)
    stamp('g2end')
    a(f's_mov_b32 s{sA}, {F2}')
    def between():
        colsum(8, 20)
        a(f's_mul_i32 s{sA+1}, s{sRB}, 81920'); a(f's_mul_i32 s{sA+2}, s{sW}, 5120'); a(f's_add_u32 s{sA+1}, s{sA+1}, s{sA+2}')
        a(f's_add_u32 s{sA+1}, s{sA+1}, {X1F}')
        a(f's_lshl_b32 s{sA+3}, s{sRB}, 12'); a(f's_lshl_b32 s{sA+4}, s{sW}, 8'); a(f's_add_u32 s{sA+3}, s{sA+3}, s{sA+4}'); a(f's_add_u32 s{sA+3}, s{sA+3}, {ST}')
        a(f's_lshl_b32 s{sA+4}, s{sW}, 10'); a(f's_add_u32 s{sA+5}, s{sA+4}, {STB}'); a(f's_add_u32 s{sA+4}, s{sA+4}, {STX}')
        a('v_lshrrev_b32 v2, 4, v0'); a('v_and_b32 v3, 15, v0')
        a('v_lshlrev_b32 v4, 10, v2'); a('v_lshlrev_b32 v5, 4, v3'); a('v_add_u32 v4, v4, v5')
        a(f'v_add_u32 v7, s{sA+5}, v5'); a(f'v_add_u32 v6, s{sA+5}, v{vL16}')
        a('v_lshlrev_b32 v2, 8, v2'); a('v_lshlrev_b32 v3, 3, v3'); a('v_add_u32 v5, v2, v3'); a(f'v_add_u32 v5, {STX}, v5')
        a(f'v_mov_b32 v{vB}, v{vL16}')
        a(f's_mul_i32 s{sK}, s{sRB}, 196608'); a(f's_mul_i32 s{sK+1}, s{sO}, 24576'); a(f's_add_u32 s{sK}, s{sK}, s{sK+1}')
        a(f's_lshr_b32 s{sK+1}, s{sW}, 1'); a(f's_mul_i32 s{sK+1}, s{sK+1}, 12288'); a(f's_add_u32 s{sK}, s{sK}, s{sK+1}'); a(f's_add_u32 s{sK}, s{sK}, {HF}')
        a(f's_and_b32 s{sK+3}, s{sW}, 1'); a(f's_lshl_b32 s{sK+1}, s{sK+3}, 12'); a(f's_add_u32 s{sK+1}, s{sK+1}, s{sK}')
        a(f's_lshl_b32 s{sK+2}, s{sK+3}, 3'); a(f's_add_u32 s{sK+2}, s{sK+2}, s{sK}'); a(f's_add_u32 s{sK+2}, s{sK+2}, 8192')
        a(f's_mov_b32 m0, s{sA+4}')
    poll([(vFL, sA)], 1, between=between)
    stamp('F2')
    a.vm(f'buffer_load_dwordx4 v4, {ws()}, s{sA+3} offen sc1 lds')
    tD = {}
    for T in range(4):
        a(f's_add_u32 m0, s{sA+2}, {20480*T}')
        if T: a(f's_add_u32 s{sA+1}, s{sA+1}, {20480 - 4096}')
        else: a('s_nop 0')
        for i in range(4): a.vm(f'buffer_load_dwordx4 v{vL16}, {ws()}, s{sA+1} offen offset:{1024*i} sc1 lds')
        a(f's_add_u32 m0, s{sA+2}, {20480*T + 4096}'); a(f's_add_u32 s{sA+1}, s{sA+1}, 4096')
        tD[T] = a.vm(f'buffer_load_dwordx4 v{vL16}, {ws()}, s{sA+1} offen sc1 lds')
    if OPT['warm']:
        a('v_lshlrev_b32 v2, 7, v0'); a(f's_mul_i32 s{sA+6}, s{sK+3}, 4096'); a(f's_add_u32 s{sA+6}, s{sA+6}, s{sK}')
        a.vm(f'buffer_load_dword v4, v2, s[{R_F}:{R_F+3}], s{sA+6} offen sc1')
    a(f's_mov_b32 s{sA+1}, 0x3acccccd')
    a.wait_vm(tD[0]); a('s_barrier')
    stamp('B9')
    tB = {}
    def rdB(n):
        T, s = divmod(n, 20)
        if s == 0 and T: a.wait_vm(tD[T]); a('s_barrier'); a(f'v_add_u32 v{vB}, 20480, v{vB}')
        tB[n] = a.ds(f'ds_read_b128 {V4(BR+4*(n%NB))}, v{vB} offset:{1024*s}')
    for n in range(LA): rdB(n)
    for k in range(8): tS = a.ds(f'ds_read_b64 {V2(SR+2*k)}, v5 offset:{1024*(k>>1) + 128*(k&1)}')
    st = [('lg', tS)]
    for k in (0, 4, 8, 12): st += [f'v_add_f32 v{SR+k}, v{SR+k}, v{SR+k+2}', f'v_add_f32 v{SR+k+1}, v{SR+k+1}, v{SR+k+3}']
    for k in (0, 8): st += [f'v_add_f32 v{SR+k}, v{SR+k}, v{SR+k+4}', f'v_add_f32 v{SR+k+1}, v{SR+k+1}, v{SR+k+5}']
    s_, q_ = SR, SR + 1
    st += [f'v_add_f32 v{s_}, v{s_}, v{SR+8}', f'v_add_f32 v{q_}, v{q_}, v{SR+9}',
           f'v_mul_f32 v{s_}, s{sA+1}, v{s_}', f'v_mul_f32 v{q_}, s{sA+1}, v{q_}', f'v_fma_f32 v{q_}, -v{s_}, v{s_}, v{q_}', f'v_max_f32 v{q_}, 0, v{q_}',
           f'v_cvt_pk_bf16_f32 v{s_}, -v{s_}, v{q_}', f'v_and_b32 v{q_}, 0xffff0000, v{s_}', f'v_lshlrev_b32 v{s_}, 16, v{s_}',
           f'v_add_f32 v{q_}, 0x3727c5ac, v{q_}', f'v_cvt_pk_bf16_f32 v{q_}, v{q_}, v{q_}', f'v_lshlrev_b32 v{q_}, 16, v{q_}', f'v_sqrt_f32 v{q_}, v{q_}',
           f'v_cvt_pk_bf16_f32 v{q_}, v{q_}, v{q_}', f'v_lshlrev_b32 v{SR+3}, 16, v{q_}', f'v_rcp_f32 v{q_}, v{SR+3}',
           f'v_mul_f32 v{SR+2}, v{q_}, v{q_}', f'v_mul_f32 v{SR+2}, {hex(K2)}, v{SR+2}', f'v_mul_f32 v{SR+2}, v{SR+2}, v{q_}', f'v_mul_f32 v{q_}, {hex(K1)}, v{q_}',
           f'ds_write_b128 v6, {V4(SR)}']
    st += [f'ds_read_b128 {V4(SR+4*T)}, v7 offset:{256*T}' for T in range(4)]
    def gelu(T):
        A_ = AC[T & 1]; R = SR + 4*T; L = []
        tmp = [1, 2, 3, 84]
        for jt in range(3):
            z = [A_ + 4*jt + i for i in range(4)]
            L += [f'v_fma_f32 v{z[i]}, v{CS+4*jt+i}, v{R}, v{z[i]}' for i in range(4)]
            L += [f'v_mul_f32 v{tmp[i]}, v{z[i]}, v{z[i]}' for i in range(4)]
            L += [f'v_fma_f32 v{tmp[i]}, v{tmp[i]}, v{R+2}, v{R+1}' for i in range(4)]
            L += [f'v_mul_f32 v{tmp[i]}, v{tmp[i]}, v{z[i]}' for i in range(4)]
            L += [f'v_exp_f32 v{tmp[i]}, v{tmp[i]}' for i in range(4)]
            L += [f'v_fma_f32 v{tmp[i]}, v{tmp[i]}, v{R+3}, v{R+3}' for i in range(4)]
            L += [f'v_rcp_f32 v{tmp[i]}, v{tmp[i]}' for i in range(4)]
            L += [f'v_mul_f32 v{z[i]}, v{z[i]}, v{tmp[i]}' for i in range(4)]
            L += [f'v_cvt_pk_bf16_f32 v{A_+2*jt+k}, v{z[2*k]}, v{z[2*k+1]}' for k in range(2)]
            if jt == 1: L.append(('st', f'buffer_store_dwordx4 {V4(A_)}, v{vL16}', f's{sK+1} offen offset:{1024*T}'))
        L.append(('st', f'buffer_store_dwordx2 {V2(A_+4)}, v{vL16}', f's{sK+2} offen offset:{1024*T}'))
        return L
    last = [None]
    def emit(x):
        if isinstance(x, str):
            a(x)
            if x.startswith('ds_read'): last[0] = a.lg_n
        elif x[0] == 'lg': a.wait_lg(x[1])
        else: store2(x[1], x[2])
    fill = st; w4 = list(range(25, 40))
    for n in range(80):
        T, s = divmod(n, 20); o = BR + 4*(n % NB)
        if s == 0 and T:
            assert not fill
            fill = gelu(T - 1)
            if T == 1: a.wait_lg(last[0]); stamp('g3p1')
        for jt in range(3):
            if jt == 0: a.wait_lg(tB[n])
            r = AC[T & 1] + 4*jt
            a(f'{MF} {V4(r)}, {W3Q(3*s+jt)}, {V4(o)}, {"0" if s == 0 else V4(r)}')
            slots = 2
            if jt == 0 and n + LA < 80: rdB(n + LA); slots = 1
            f = 3*s + jt
            if T == 3 and f < 20: wload(W4Q(40+f), sU1, 40 + f)
            elif T == 0 and s >= 10 and jt and w4: g = w4.pop(0); wload(W4Q(g), sU1, g)
            if T and s == 0 and jt < 2: slots = 0
            if T == 0 and s < 1: slots = 0
            left = 60 - f
            while fill and (slots > 0 or len(fill) > 2*left - 2): emit(fill.pop(0)); slots -= 1
    assert not fill and not w4
    stamp('g3loop')
    a('s_barrier')
    A_ = AC[1]; R = SR + 12; T = BR
    Z = [A_ + 2*k for k in range(6)]; TT = [T + 2*k for k in range(6)]
    for k, z in enumerate(Z): a(f'v_pk_fma_f32 {V2(z)}, {V2(CS+2*k)}, {V2(R)}, {V2(z)} op_sel_hi:[1,0,1]')
    for z, t in zip(Z, TT): a(f'v_pk_mul_f32 {V2(t)}, {V2(z)}, {V2(z)}')
    for z, t in zip(Z, TT): a(f'v_pk_fma_f32 {V2(t)}, {V2(t)}, {V2(R+2)}, {V2(R)} op_sel:[0,0,1] op_sel_hi:[1,0,1]')
    for z, t in zip(Z, TT): a(f'v_pk_mul_f32 {V2(t)}, {V2(t)}, {V2(z)}')
    for z, t in zip(Z, TT): a(f'v_exp_f32 v{t}, v{t}'); a(f'v_exp_f32 v{t+1}, v{t+1}')
    for z, t in zip(Z, TT): a(f'v_pk_fma_f32 {V2(t)}, {V2(t)}, {V2(R+2)}, {V2(R+2)} op_sel:[0,1,1] op_sel_hi:[1,1,1]')
    for z, t in zip(Z, TT): a(f'v_rcp_f32 v{t}, v{t}'); a(f'v_rcp_f32 v{t+1}, v{t+1}')
    for z, t in zip(Z, TT): a(f'v_pk_mul_f32 {V2(t)}, {V2(t)}, {V2(z)}')
    for k, t in enumerate(TT): a(f'v_cvt_pk_bf16_f32 v{A_+k}, v{t}, v{t+1}')
    store2(f'buffer_store_dwordx4 {V4(A_)}, v{vL16}', f's{sK+1} offen offset:3072')
    t = store2(f'buffer_store_dwordx2 {V2(A_+4)}, v{vL16}', f's{sK+2} offen offset:3072')
    stamp('g3st')
    return t

def g4(tok):
    BR = 28; NB = 8; LA = 4; vB = 60; vO = 64; RS = 66
    a(f's_mov_b32 s{sA+1}, 0xffff0000')
    for k in range(10):
        a(f'v_lshlrev_b32 v{RS+2*k}, 16, v{vHR+k}'); a(f'v_and_b32 v{RS+2*k+1}, s{sA+1}, v{vHR+k}')
    own_flag(F3, tok)
    stamp('g3end')
    a(f's_mov_b32 s{sA}, {F3}')
    def between():
        for k in range(10): a(f'v_lshlrev_b32 v{OA+2*k}, 16, v{vX1+k}'); a(f'v_and_b32 v{OA+2*k+1}, s{sA+1}, v{vX1+k}')
        for k in range(10): a(f'v_pk_add_f32 {V2(OA+2*k)}, {V2(OA+2*k)}, {V2(RS+2*k)}')
        a(f's_mul_i32 s{sA+1}, s{sRB}, 196608'); a(f's_mul_i32 s{sA+2}, s{sW}, 49152'); a(f's_add_u32 s{sA+1}, s{sA+1}, s{sA+2}'); a(f's_add_u32 s{sA+1}, s{sA+1}, {HF}')
        a(f's_mul_i32 s{sA+2}, s{sW}, 20480'); a(f's_add_u32 s{sA+2}, s{sA+2}, {RED}')
        for p in range(4):
            a(f's_lshl_b32 s{sA+3}, s{sTP+p}, 10'); a(f's_add_u32 s{sA+3}, s{sA+3}, s{sA+2}'); a(f'v_add_u32 v{vB+p}, s{sA+3}, v{vL16}')
        for k in range(4): a(f'v_subrev_u32 v{vRW+k}, {RED}, v{vRW+k}')
        a(f'v_and_b32 v{vO}, 15, v0'); a(f'v_mul_u32_u24 v{vO}, 1280, v{vO}'); a('v_lshrrev_b32 v2, 4, v0'); a('v_mul_u32_u24 v2, 40, v2'); a(f'v_add_u32 v{vO}, v{vO}, v2')
        a(f's_lshl_b32 s{sA+6}, s{sRB}, 2'); a(f's_add_u32 s{sA+6}, s{sA+6}, s{sW}'); a(f's_mul_i32 s{sA+6}, s{sA+6}, 20480')
        a(f's_mul_i32 s{sA+7}, s{sO}, 160'); a(f's_add_u32 s{sA+7}, s{sA+7}, s{sA+6}')
    poll([(vFL, sA)], 1, between=between)
    stamp('F3')
    tD = {}
    def dma(s):
        a(f's_add_u32 m0, s{sA+2}, {4096*(s % 5)}')
        if s: a(f's_add_u32 s{sA+1}, s{sA+1}, 4096')
        else: a('s_nop 0')
        for k in range(4): tD[s] = a.vm(f'buffer_load_dwordx4 v{vL16}, {ws()}, s{sA+1} offen offset:{1024*k} sc1 lds')
    for s in range(5): dma(s)
    U = units(12); tB = {}
    def rdB(n):
        s, p = U[n]
        a.wait_vm(tD[s])
        tB[n] = a.ds(f'ds_read_b128 {V4(BR+4*(n%NB))}, v{vB+p} offset:{4096*(s % 5)}')
    def acc(p, jt): return V4(OA + 4*jt) if p == 3 else Q(70 + 5*p + jt)
    for n in range(LA): rdB(n)
    stamp('g4d0')
    fill = []
    for n, (s, p) in enumerate(U):
        o = BR + 4*(n % NB)
        a.wait_lg(tB[n])
        if p == 3 and s + 5 < 12: dma(s + 5)
        for jt in range(5):
            a(f'{MF} {acc(p, jt)}, {W4Q(5*s+jt)}, {V4(o)}, {"0" if (s == 0 and p < 3) else acc(p, jt)}')
            if jt == 0 and n + LA < len(U): rdB(n + LA)
            if jt >= 1 and fill: a(fill.pop(0))
        if s == 11 and p < 3:
            fill = [f'ds_write_b128 v{vRW+p}, {acc(p, jt)} offset:{1024*jt}' for jt in range(5)]
    assert not fill
    stamp('g4loop')
    barrier()
    stamp('B12')
    P = [136, 156, 176]; tp = []
    for jt in range(5):
        for k in range(3): t = a.ds(f'ds_read_b128 {V4(P[k]+4*jt)}, v{vRR} offset:{5120*k + 1024*jt}')
        tp.append(t)
    O = f's[{R_OUT}:{R_OUT+3}]'
    for jt in range(5):
        a.wait_lg(tp[jt])
        for k in range(2):
            r = 4*jt + 2*k
            a(f'v_pk_add_f32 {V2(P[0]+r)}, {V2(P[0]+r)}, {V2(P[1]+r)}'); a(f'v_pk_add_f32 {V2(OA+r)}, {V2(OA+r)}, {V2(P[2]+r)}')
        for k in range(2):
            r = 4*jt + 2*k
            a(f'v_pk_add_f32 {V2(OA+r)}, {V2(OA+r)}, {V2(P[0]+r)}')
        for k in range(2): a(f'v_cvt_pk_bf16_f32 v{28+2*jt+k}, v{OA+4*jt+2*k}, v{OA+4*jt+2*k+1}')
        if jt == 1: a.vm(f'buffer_store_dwordx4 v[28:31], v{vO}, {O}, s{sA+7} offen')
        if jt == 3: a.vm(f'buffer_store_dwordx4 v[32:35], v{vO}, {O}, s{sA+7} offen offset:16')
        if jt == 4: a.vm(f'buffer_store_dwordx2 v[36:37], v{vO}, {O}, s{sA+7} offen offset:32')
    if OPT['ts']: a.wait_all()
    stamp('g4end')
```

```python
import sys, os
sys.path.insert(0, os.path.dirname(os.path.abspath(__file__)))
from common import *
import front, gemm
def epilogue_end():
    if OPT['ts']:
        a(f's_lshl_b32 s{sA}, s2, 2'); a(f's_add_u32 s{sA}, s{sA}, s{sW}'); a(f's_lshl_b32 s{sA}, s{sA}, 6'); a(f's_add_u32 s{sA}, s{sA}, {TS}')
        a('v_mov_b32 v1, 0')
        for k in range(16): a(f'v_mov_b32 v{4+k}, s{sTS+k}')
        a('s_mov_b64 exec, 1')
        for k in range(4): a(f'buffer_store_dwordx4 v[{4+4*k}:{7+4*k}], v1, {ws()}, s{sA} offen offset:{16*k}')
        a('s_memrealtime vcc'); a.wait_all(); a('v_mov_b32 v4, vcc_lo')
        a(f's_lshl_b32 s{sA}, s2, 2'); a(f's_add_u32 s{sA}, s{sA}, s{sW}'); a(f's_lshl_b32 s{sA}, s{sA}, 2'); a(f's_add_u32 s{sA}, s{sA}, 0xF000')
        a(f'buffer_store_dword v4, v1, {ws()}, s{sA} offen')
        a.wait_all()
    a.label('END')
    a('s_endpgm')
front.prologue(); front.front(); gemm.window()
if OPT['stop'] <= 1:
    a('s_barrier'); gemm.epoch_write()
else:
    t = gemm.g1()
    if OPT['stop'] > 2: t = gemm.g2(t)
    if OPT['stop'] > 3: t = gemm.g3(t)
    if OPT['stop'] > 4: gemm.g4(t)
if OPT['stop'] <= 4: a.wait_all()
epilogue_end()
hdr = open(os.path.join(os.path.dirname(os.path.abspath(__file__)), '..', 'cdna_kernels', NAME + '.s.ref')).read().split('\n')
head = [l for l in hdr if l.startswith(';') and '@launch' not in l]
head = head[:next(i for i, l in enumerate(head) if 'Override launch' in l)]
txt = '\n'.join(head) + '\n; @launch grid=(256,1,1) block=(256,1,1) lds=163840\n'
txt += f'''.amdgcn_target "amdgcn-amd-amdhsa--gfx950"
.text
.globl {NAME}_kernel
.p2align 8
.type {NAME}_kernel,@function
{NAME}_kernel:
''' + a.finish() + f'''.section .rodata,"a"
.p2align 6
.amdhsa_kernel {NAME}_kernel
  .amdhsa_next_free_vgpr 512
  .amdhsa_next_free_sgpr 102
  .amdhsa_accum_offset 256
  .amdhsa_group_segment_fixed_size 0
  .amdhsa_kernarg_size 120
  .amdhsa_user_sgpr_count 2
  .amdhsa_user_sgpr_kernarg_segment_ptr 1
  .amdhsa_system_sgpr_workgroup_id_x 1
.end_amdhsa_kernel
'''
open(sys.argv[1], 'w').write(txt)
if OPT['ts']: open(sys.argv[1][:-2] + '.names', 'w').write(' '.join(TSSETS[OPT['ts']]))
print('wrote', sys.argv[1], len(txt), 'bytes', txt.count('\n'), 'lines')
```

```python
from common import *
MF = 'v_mfma_f32_16x16x32_bf16'
OA = 8; vRW = 86; vRR = 89; vX1 = 90; vHR = 100; vFL = 111
sTP = 24
sK = 28
K1 = 0xc0135761; K2 = 0xbdd2d3e8
def W3Q(f): return Q(50 + f) if f < 35 else Q(f - 35)
def W4Q(f): return Q(25 + f) if f < 25 else (Q(85 + f - 25) if f < 40 else Q(50 + f - 40))
def wload(dst, s, f):
    if f and f % 4 == 0: a(f's_add_u32 s{s}, s{s}, 4096')
    return a.vm(f'buffer_load_dwordx4 {dst}, v{vL16}, {ws()}, s{s} offen offset:{(f%4)*1024} sc1')
def qreduce(s, q):
    a(f'v_permlane16_swap_b32 v{s}, v{q}'); a(f'v_add_f32 v{s}, v{s}, v{q}')
    a(f'v_mov_b32 v{q}, v{s}'); a(f'v_permlane32_swap_b32 v{s}, v{q}'); a(f'v_add_f32 v{s}, v{s}, v{q}')
    a(f'v_mov_b32 v{q}, v{s}'); a(f'v_permlane16_swap_b32 v{s}, v{q}')
def own_flag(base, tok, vt=2):
    a(f's_lshl_b32 s{sA}, s{sLIN}, 5'); a(f's_add_u32 s{sA}, s{sA}, s{sW}'); a(f's_lshl_b32 s{sA}, s{sA}, 2'); a(f's_add_u32 s{sA}, s{sA}, {base}')
    a.wait_vm(tok)
    set_flag(sA, vt, dual=True)
def wbl2(vt=1):
    L = a.newlabel('nowb')
    a(f's_or_b32 s{sT}, s{sJ}, s{sW}'); a(f's_cmp_lg_u32 s{sT}, 0'); a(f's_cbranch_scc1 {L}')
    L2 = a.newlabel('wbe')
    a('buffer_wbl2 sc1'); a(f's_branch {L2}')
    a.label(L)
    a(f'buffer_load_dword v{vt}, off, {ws()}, 0'); a.vm_n -= 1
    a.label(L2)
def units(ns):
    return [(s, p) for s in range(ns - 2) for p in range(4)] + [(s, p) for p in range(4) for s in (ns - 2, ns - 1)]

def window():
    a('s_barrier')
    a(f's_mul_i32 s{sU0}, s{sSL}, 61440'); a(f's_add_u32 s{sU1}, s{sU0}, {W4F}'); a(f's_add_u32 s{sU0}, s{sU0}, {W3F}')
    n0 = a.vm_n
    for f in range(OPT['n3a']): wload(W3Q(f), sU0, f)
    if OPT['warm']:
        a('v_lshlrev_b32 v1, 7, v0')
        a(f's_lshl_b32 s{sA}, s{sRB}, 2'); a(f's_add_u32 s{sA}, s{sA}, s{sW}'); a(f's_lshl_b32 s{sA+2}, s{sA}, 10'); a(f's_mul_i32 s{sA}, s{sA}, 20480')
        a(f's_mul_i32 s{sA+1}, s{sG}, 5120'); a(f's_add_u32 s{sA}, s{sA}, s{sA+1}'); a(f's_add_u32 s{sA+1}, s{sA}, {X1F}'); a(f's_add_u32 s{sA}, s{sA}, {H1F}')
        a(f's_lshl_b32 s{sA+3}, s{sO}, 7'); a(f's_add_u32 s{sA+2}, s{sA+2}, s{sA+3}'); a(f's_add_u32 s{sA+2}, s{sA+2}, {ST}')
        a(f's_lshl_b32 s{sA+3}, s{sLIN}, 7'); a(f's_add_u32 s{sA+3}, s{sA+3}, {F1}')
        a('v_lshlrev_b32 v3, 15, v0')
        a('s_mov_b32 exec_hi, 0xff')
        for k in range(2): a.vm(f'buffer_load_dword v109, v1, s[{R_F}:{R_F+3}], s{sA+k} offen sc1')
        a('s_mov_b64 exec, 1'); a.vm(f'buffer_load_dword v109, v1, s[{R_F}:{R_F+3}], s{sA+2} offen sc1')
        a('s_mov_b64 exec, 7'); a.vm(f'buffer_load_dword v109, v3, s[{R_F}:{R_F+3}], s{sA+3} offen sc1')
        a('s_mov_b64 exec, -1')
    a(f's_lshl_b32 s{sA}, s2, 7'); a(f's_add_u32 s{sA}, s{sA}, {FH}')
    a(f'v_mov_b32 v4, s{sTAG}'); a('v_mov_b32 v5, 0')
    a.vm_done = n0 - 1; a.wait_vm(n0)
    a('s_barrier')
    L = a.newlabel('nofl')
    a(f's_cmp_lg_u32 s{sW}, 0'); a(f's_cbranch_scc1 {L}')
    a('s_mov_b64 exec, 1'); a(f'buffer_store_dword v4, v5, {ws()}, s{sA} offen sc1'); a('s_mov_b64 exec, -1')
    a.label(L)
    stamp('B2')
    for f in range(OPT['n3a'], 35): wload(W3Q(f), sU0, f)
    ONES = 96
    for k in range(4): a(f'v_mov_b32 v{ONES+k}, 0x3f803f80')
    for s in range(5):
        for jt in range(5): a(f'{MF} {V4(OA+4*jt)}, {Q(5*s+jt)}, {V4(ONES)}, {"0" if s == 0 else V4(OA+4*jt)}')
    for p in range(4): a(f's_add_u32 s{sTP+p}, s{sW}, {p+1}'); a(f's_and_b32 s{sTP+p}, s{sTP+p}, 3')
    a('v_lshrrev_b32 v3, 4, v0'); a('v_lshlrev_b32 v4, 4, v3'); a(f'v_add_u32 v4, {CSP}, v4')
    a(f's_mul_i32 s{sA}, s{sW}, 320'); a(f'v_add_u32 v85, s{sA}, v4')
    a('s_mov_b32 exec_lo, 0x00010001'); a('s_mov_b32 exec_hi, 0x00010001')
    for jt in range(5): a.ds(f'ds_write_b128 v85, {V4(OA+4*jt)} offset:{64*jt}')
    a('s_mov_b64 exec, -1')
    for p in range(3):
        a(f's_mul_i32 s{sA}, s{sTP+p}, 15360'); a(f's_add_u32 s{sA}, s{sA}, {RED + 5120*p}'); a(f'v_add_u32 v{vRW+p}, s{sA}, v{vL16}')
    a(f's_mul_i32 s{sA}, s{sW}, 15360'); a(f's_add_u32 s{sA}, s{sA}, {RED}'); a(f'v_add_u32 v{vRR}, s{sA}, v{vL16}')
    a(f'v_and_b32 v5, 3, v0'); a('v_lshlrev_b32 v6, 2, v5'); a('v_and_b32 v7, 4, v0'); a('v_lshlrev_b32 v7, 5, v7'); a(f'v_add_u32 v{vFL}, v6, v7')
    a(f's_lshl_b32 s{sA}, s{sRB}, 2'); a(f's_add_u32 s{sA}, s{sA}, s{sW}'); a(f's_lshl_b32 s{sA}, s{sA}, 8'); a(f'v_add_u32 v{vFL}, s{sA}, v{vFL}')
    barrier()
    stamp('B3')
    R = [196, 216, 236, 28]
    tk = []
    for jt in range(5):
        for k in range(4): t = a.ds(f'ds_read_b128 {V4(R[k]+4*jt)}, v4 offset:{320*k + 64*jt}')
        tk.append(t)
    a('v_lshrrev_b32 v6, 2, v0'); a('v_lshlrev_b32 v7, 7, v6'); a('v_lshlrev_b32 v5, 3, v5'); a('v_add_u32 v7, v7, v5')
    a('v_and_b32 v6, 3, v6'); a('v_and_b32 v2, 1, v3'); a('v_xor_b32 v2, v2, v6'); a('v_lshlrev_b32 v2, 5, v2')
    a('v_add_u32 v7, v7, v2'); a(f's_mul_i32 s{sA}, s{sW}, 20480'); a(f'v_add_u32 v7, s{sA}, v7')
    for p in range(4): a(f's_lshl_b32 s{sA+1}, s{sTP+p}, 5'); a(f'v_xor_b32 v{90+p}, s{sA+1}, v7')
    a('v_mul_u32_u24 v3, 20, v3'); a('v_add_u32 v3, v3, v6'); a('v_lshlrev_b32 v3, 7, v3'); a('v_add_u32 v3, v3, v5'); a('v_add_u32 v3, v3, v2')
    a(f's_mul_i32 s{sA}, s{sO}, 10240'); a(f'v_add_u32 v3, s{sA}, v3'); a(f's_lshl_b32 s{sA+1}, s{sW}, 5'); a(f'v_xor_b32 v94, s{sA+1}, v3'); a('v_xor_b32 v95, 32, v94')
    a('v_and_b32 v84, 15, v0'); a('v_lshlrev_b32 v84, 5, v84'); a(f'v_add_u32 v84, {STX}, v84')
    for jt in range(5):
        a.wait_lg(tk[jt])
        for k in range(2):
            r = 4*jt + 2*k
            a(f'v_pk_add_f32 {V2(R[0]+r)}, {V2(R[0]+r)}, {V2(R[1]+r)}'); a(f'v_pk_add_f32 {V2(R[2]+r)}, {V2(R[2]+r)}, {V2(R[3]+r)}')
        for k in range(2):
            r = 4*jt + 2*k
            a(f'v_pk_add_f32 {V2(R[0]+r)}, {V2(R[0]+r)}, {V2(R[2]+r)}')
    a('s_mov_b32 exec_lo, 0x00010001'); a('s_mov_b32 exec_hi, 0x00010001')
    for jt in range(5): a.ds(f'ds_write_b128 v85, {V4(R[0]+4*jt)} offset:{CST - CSP + 64*jt}')
    a('s_mov_b64 exec, -1')
    a('v_lshrrev_b32 v1, 1, v0'); a('v_lshlrev_b32 v1, 3, v1'); a('v_and_b32 v2, 1, v0'); a('v_add_u32 v1, v1, v2')
    a(f's_lshl_b32 s{sA}, s{sW}, 1'); a(f'v_add_u32 v1, s{sA}, v1'); a('v_lshlrev_b32 v1, 7, v1')
    a('v_and_b32 v2, 3, v0'); a('v_lshlrev_b32 v2, 7, v2')
    a(f's_mov_b32 s{sA}, {FH}'); a(f's_lshl_b32 s{sA+1}, s{sSL}, 9'); a(f's_add_u32 s{sA+1}, s{sA+1}, {FW4}')
    a(f's_mul_i32 s{sA+2}, s{sRB}, 81920'); a(f's_mul_i32 s{sA+3}, s{sW}, 20480'); a(f's_add_u32 s{sA+2}, s{sA+2}, s{sA+3}'); a(f's_add_u32 s{sA+2}, s{sA+2}, {HT}')
    a(f's_mov_b32 m0, s{sA+3}')
    a(f's_mov_b32 s{sK}, 0x22222222'); a(f's_mov_b32 s{sK+1}, s{sK}'); a(f's_mov_b32 s{sK+2}, 0x44444444'); a(f's_mov_b32 s{sK+3}, s{sK+2}')
    a(f's_mov_b32 s{sK+4}, 0x88888888'); a(f's_mov_b32 s{sK+5}, s{sK+4}'); a(f's_mov_b32 s{sK+6}, 0x00f0000f'); a(f's_mov_b32 s{sK+7}, 0xf0000f00')
    poll([(1, sA), (2, sA+1)], 3)
    stamp('FH')

def epoch_write():
    L = a.newlabel('noep')
    a(f's_or_b32 s{sT}, s2, s{sW}'); a(f's_cmp_lg_u32 s{sT}, 0'); a(f's_cbranch_scc1 {L}')
    set_flag(sT, 2)
    a.label(L)

def g1():
    ONES = 96; GR = 28; SM = 44; BR = 60; NB = 6; LA = 4; vB = 90
    tD = {}
    for i in range(20):
        if i and i % 4 == 0: a(f's_add_u32 s{sA+2}, s{sA+2}, 4096'); a('s_add_u32 m0, m0, 4096')
        tD[i//4] = a.vm(f'buffer_load_dwordx4 v{vL16}, {ws()}, s{sA+2} offen offset:{(i%4)*1024} sc1 lds')
    U = units(5); tB = {}
    def rdB(n):
        s, p = U[n]; o = BR + 4*(n % NB)
        a.wait_vm(tD[s])
        a.ds(f'ds_read_b64_tr_b16 {V2(o)}, v{vB+p} offset:{4096*s}')
        tB[n] = a.ds(f'ds_read_b64_tr_b16 {V2(o+2)}, v{vB+p} offset:{4096*s + 2048}')
    def acc(p, jt): return V4(OA + 4*jt) if p == 3 else Q(85 + 5*p + jt)
    def stat_out(p):
        x = SM + 4*p + 1; g = GR + 4*p
        return [f'v_cndmask_b32_e64 v{x}, v{g}, v{g+1}, s[{sK}:{sK+1}]', f'v_cndmask_b32_e64 v{g+2}, v{g+2}, v{g+3}, s[{sK+4}:{sK+5}]',
                f's_lshl_b32 s{sA}, s{sTP+p}, 9', f's_lshl_b32 s{sA+1}, s{sW}, 3', f's_add_u32 s{sA}, s{sA}, s{sA+1}',
                f's_or_b64 vcc, s[{sK+2}:{sK+3}], s[{sK+4}:{sK+5}]', f'v_add_u32 v{g}, s{sA}, v84',
                f'v_cndmask_b32 v{x}, v{x}, v{g+2}, vcc',
                f's_mov_b64 exec, s[{sK+6}:{sK+7}]', f'ds_write_b64 v{g}, {V2(x-1)}', 's_mov_b64 exec, -1']
    for n in range(LA): rdB(n)
    stamp('g1d0')
    fill = []
    for n, (s, p) in enumerate(U):
        o = BR + 4*(n % NB)
        a.wait_lg(tB[n])
        ms = [f'{MF} {V4(GR+4*p)}, {V4(o)}, {V4(o)}, {"0" if s == 0 else V4(GR+4*p)}',
              f'{MF} {V4(SM+4*p)}, {V4(ONES)}, {V4(o)}, {"0" if s == 0 else V4(SM+4*p)}']
        ms += [f'{MF} {acc(p, jt)}, {Q(5*s+jt)}, {V4(o)}, {"0" if s == 0 else acc(p, jt)}' for jt in range(5)]
        for i, m in enumerate(ms):
            a(m)
            if i == 0 and n + LA < len(U): rdB(n + LA)
            if p == 3 and i >= 2: wload(Q(5*s+i-2), sU0, 35 + 5*s + i - 2)
            if i >= 2 and fill:
                x = fill.pop(0)
                for y in (x if isinstance(x, list) else [x]): a(y)
            if s == 4 and p == 3 and i == 4:
                for y in stat_out(3): a(y)
        if s == 4 and p < 3:
            fill = [stat_out(p)] + [f'ds_write_b128 v{vRW+p}, {acc(p, jt)} offset:{1024*jt}' for jt in range(5)]
    assert not fill
    stamp('g1loop')
    CS = 60
    tc = [a.ds(f'ds_read_b128 {V4(CS+4*jt)}, v85 offset:{CST - CSP + 64*jt}') for jt in range(5)]
    a(f's_lshl_b32 s{sA}, s{sW}, 9'); a(f'v_add_u32 v84, s{sA}, v84')
    barrier()
    stamp('B5')
    a.ds(f'ds_read_b128 v[28:31], v84'); ts = a.ds(f'ds_read_b128 v[32:35], v84 offset:16')
    P = [196, 216, 236]; tp = []
    for jt in range(5):
        for k in range(3): t = a.ds(f'ds_read_b128 {V4(P[k]+4*jt)}, v{vRR} offset:{5120*k + 1024*jt}')
        tp.append(t)
    epoch_write()
    a.wait_lg(ts)
    a('v_pk_add_f32 v[28:29], v[28:29], v[30:31]'); a('v_pk_add_f32 v[32:33], v[32:33], v[34:35]'); a(f's_mov_b32 s{sA+1}, 0x3acccccd')
    a('v_pk_add_f32 v[28:29], v[28:29], v[32:33]')
    S_, Q_ = 28, 29
    a(f'v_mul_f32 v{S_}, s{sA+1}, v{S_}'); a(f'v_mul_f32 v{Q_}, s{sA+1}, v{Q_}')
    a(f'v_fma_f32 v{Q_}, -v{S_}, v{S_}, v{Q_}'); a(f'v_max_f32 v{Q_}, 0, v{Q_}')
    a(f'v_cvt_pk_bf16_f32 v30, v{S_}, v{Q_}'); a('v_and_b32 v31, 0xffff0000, v30'); a('v_lshlrev_b32 v30, 16, v30')
    a('v_add_f32 v31, 0x3727c5ac, v31'); bf(31, 31); a('v_sqrt_f32 v31, v31'); bf(31, 31)
    vI = 6
    a(f'v_rcp_f32 v{vI}, v31'); a(f'v_sub_f32 v{S_}, v{S_}, v30'); a(f'v_mul_f32 v{Q_}, v{Q_}, v{vI}'); a(f'v_mul_f32 v{S_}, v{S_}, v{vI}')
    a(f'v_mul_f32 v{Q_}, v{Q_}, v{vI}')
    a(f'v_cvt_pk_bf16_f32 v{S_}, v{S_}, v{Q_}'); a(f'v_and_b32 v{Q_}, 0xffff0000, v{S_}'); a(f'v_lshlrev_b32 v{S_}, 16, v{S_}')
    a(f'v_add_f32 v{Q_}, 0x3727c5ac, v{Q_}'); bf(Q_, Q_); a(f'v_sqrt_f32 v{Q_}, v{Q_}'); bf(Q_, Q_)
    for jt in range(5): th = a.ds(f'ds_read_b64_tr_b16 {V2(vHR+2*jt)}, v{94+(jt&1)} offset:{512*jt}')
    a(f'v_mul_f32_e64 v{vI+1}, -v30, v{vI}')
    a(f'v_fma_f32 v32, -v{S_}, v31, -v30')
    a(f'v_mul_f32 v33, v{Q_}, v31')
    a('v_rcp_f32 v34, v33')
    a('v_mul_f32 v35, v34, v34'); a(f'v_mul_f32 v35, {hex(K2)}, v35'); a('v_mul_f32 v35, v35, v34'); a(f'v_mul_f32 v34, {hex(K1)}, v34')
    for jt in range(5):
        a.wait_lg(tp[jt])
        for k in range(2):
            r = 4*jt + 2*k
            a(f'v_pk_add_f32 {V2(P[0]+r)}, {V2(P[0]+r)}, {V2(P[1]+r)}'); a(f'v_pk_add_f32 {V2(OA+r)}, {V2(OA+r)}, {V2(P[2]+r)}')
        for k in range(2):
            r = 4*jt + 2*k
            a(f'v_pk_fma_f32 {V2(P[0]+r)}, {V2(CS+r)}, v[32:33], {V2(P[0]+r)} op_sel_hi:[1,0,1]')
        for k in range(2):
            r = 4*jt + 2*k
            a(f'v_pk_add_f32 {V2(OA+r)}, {V2(OA+r)}, {V2(P[0]+r)}')
    a.wait_lg(th); a('s_barrier')
    T = 60; O = 48
    Z = [OA + 2*k for k in range(10)]; TT = [T + 2*k for k in range(10)]
    for z, t in zip(Z, TT): a(f'v_pk_mul_f32 {V2(t)}, {V2(z)}, {V2(z)}')
    for z, t in zip(Z, TT): a(f'v_pk_fma_f32 {V2(t)}, {V2(t)}, v[34:35], v[34:35] op_sel:[0,1,0] op_sel_hi:[1,1,0]')
    for z, t in zip(Z, TT): a(f'v_pk_mul_f32 {V2(t)}, {V2(t)}, {V2(z)}')
    for z, t in zip(Z, TT): a(f'v_exp_f32 v{t}, v{t}'); a(f'v_exp_f32 v{t+1}, v{t+1}')
    for z, t in zip(Z, TT): a(f'v_pk_fma_f32 {V2(t)}, {V2(t)}, v[32:33], v[32:33] op_sel:[0,1,1] op_sel_hi:[1,1,1]')
    for z, t in zip(Z, TT): a(f'v_rcp_f32 v{t}, v{t}'); a(f'v_rcp_f32 v{t+1}, v{t+1}')
    a(f's_lshl_b32 s{sA}, s{sRB}, 2'); a(f's_add_u32 s{sA}, s{sA}, s{sW}'); a(f's_mul_i32 s{sA}, s{sA}, 20480')
    a(f's_mul_i32 s{sA+1}, s{sG}, 5120'); a(f's_add_u32 s{sK+8}, s{sA}, s{sA+1}')
    a(f's_add_u32 s{sA}, s{sK+8}, {H1F}')
    a(f's_mul_i32 s{sA+1}, s{sE}, 3072'); a(f's_add_u32 s{sA+1}, s{sA+1}, s{sA}')
    a(f's_lshl_b32 s{sA+2}, s{sE}, 3'); a(f's_add_u32 s{sA+2}, s{sA+2}, s{sA}')
    a(f's_lshl_b32 s{sA+3}, s{sLIN}, 9'); a(f's_add_u32 s{sA+3}, s{sA+3}, {HALO}')
    a(f's_mov_b32 s{sA+4}, 0xc000c000'); a(f's_bitcmp1_b32 s{sG}, 0'); a(f's_cselect_b32 s{sA+4}, 0x00030003, s{sA+4}'); a(f's_cselect_b32 s{sA+5}, 0, 3')
    a('v_lshrrev_b32 v1, 4, v0'); a('v_lshlrev_b32 v1, 5, v1'); a('v_and_b32 v2, 1, v0'); a('v_lshlrev_b32 v2, 4, v2')
    a(f's_cmp_eq_u32 s{sW}, s{sA+5}'); a(f's_cselect_b32 s{sA+5}, 0, 0x80000000'); a(f'v_add3_u32 v1, v1, v2, s{sA+5}')
    for z, t in zip(Z, TT): a(f'v_pk_mul_f32 {V2(t)}, {V2(t)}, {V2(z)}')
    for k, t in enumerate(TT): a(f'v_cvt_pk_bf16_f32 v{O+k}, v{t}, v{t+1}')
    store2(f'buffer_store_dwordx4 {V4(O)}, v{vL16}', f's{sA+1} offen')
    store2(f'buffer_store_dwordx4 {V4(O+4)}, v{vL16}', f's{sA+1} offen offset:1024')
    t = store2(f'buffer_store_dwordx2 {V2(O+8)}, v{vL16}', f's{sA+2} offen offset:2048')
    a(f'v_mov_b32 v60, v{O+3}'); a(f'v_mov_b32 v61, v{O+7}'); a(f'v_mov_b32 v63, s{sTAG}')
    a(f'v_mov_b32 v{O+11}, s{sTAG}'); a(f'v_mov_b32 v{O+3}, s{sTAG}'); a(f'v_mov_b32 v{O+7}, s{sTAG}')
    a(f's_mov_b32 exec_lo, s{sA+4}'); a(f's_mov_b32 exec_hi, s{sA+4}')
    for k in range(4): a.vm(f'buffer_store_dwordx4 {V4(O+4*k)}, v1, {ws()}, s{sA+3} offen offset:{128*k} sc1')
    a('s_mov_b64 exec, -1')
    stamp('g1st')
    return t

def g2(tok):
    BR = 28; NB = 8; LA = 4; vB = 60; HG = 64
    a(f's_mov_b32 s{sA+1}, 0xffff0000')
    for k in range(10): a(f'v_lshlrev_b32 v{OA+2*k}, 16, v{vHR+k}'); a(f'v_and_b32 v{OA+2*k+1}, s{sA+1}, v{vHR+k}')
    for k in range(10): a(f'v_pk_fma_f32 {V2(OA+2*k)}, {V2(OA+2*k)}, v[6:7], v[6:7] op_sel:[0,0,1] op_sel_hi:[1,0,1]')
    own_flag(F1, tok)
    stamp('g1end')
    a(f's_mov_b32 s{sA}, {F1}')
    def between():
        a(f's_lshr_b32 s{sA+1}, s{sW}, 1'); a(f's_add_u32 s{sA+1}, s{sA+1}, 1')
        a(f's_sub_u32 s{sA+2}, 16, s{sA+1}'); a(f's_add_u32 s{sA+3}, 16, s{sA+1}')
        a(f's_lshl_b32 s{sA+4}, 1, s{sA+1}'); a(f's_sub_u32 s{sA+4}, s{sA+4}, 1')
        a(f's_lshl_b32 s{sA+5}, s{sA+4}, s{sA+2}')
        a(f's_mul_i32 s{sA+4}, s{sA+4}, 0x10001'); a(f's_mul_i32 s{sA+5}, s{sA+5}, 0x10001')
        a(f's_not_b32 s{sA+4}, s{sA+4}'); a(f's_not_b32 s{sA+5}, s{sA+5}')
        a(f's_bitcmp1_b32 s{sW}, 0')
        a(f's_cselect_b32 s{sA+3}, s{sA+3}, s{sA+2}')
        a(f's_cselect_b32 s{sK+4}, -1, s{sA+4}'); a(f's_cselect_b32 s{sK+6}, s{sA+5}, -1')
        a(f's_cselect_b32 s{sA+4}, 1, -1'); a(f's_cselect_b32 s{sA+5}, {3*5120}, 0')
        a(f's_mov_b32 s{sA+6}, 0xaaaa'); a(f's_cselect_b32 s{sA+6}, 0x5555, s{sA+6}')
        a(f's_cselect_b32 s{sA+7}, s{sA+2}, s{sA+1}'); a(f's_cselect_b32 s{sT}, 0, 2'); a(f's_sub_u32 s{sA+7}, s{sA+7}, s{sT}')
        a(f's_mov_b32 s{sK+5}, s{sK+4}'); a(f's_mov_b32 s{sK+7}, s{sK+6}')
        a(f's_cmp_ge_u32 s{sW}, 2'); a(f's_cselect_b32 s{sK+10}, 0xffff, s{sA+6}'); a(f's_mov_b32 s{sK+11}, 0')
        a('v_and_b32 v3, 15, v0'); a(f'v_add_u32 v3, s{sA+3}, v3'); a('v_lshrrev_b32 v4, 4, v3'); a('v_mul_u32_u24 v4, 20480, v4')
        a('v_and_b32 v3, 15, v3'); a('v_lshlrev_b32 v3, 4, v3'); a('v_lshrrev_b32 v5, 4, v0'); a('v_lshlrev_b32 v5, 8, v5'); a('v_add3_u32 v3, v3, v4, v5')
        a(f's_mul_i32 s{sA+1}, s{sRB}, 81920'); a(f's_mul_i32 s{sA+2}, s{sW}, 5120'); a(f's_add_u32 s{sA+1}, s{sA+1}, s{sA+2}')
        for T in range(4): a(f's_add_u32 s{sK+T}, s{sA+1}, {H1F - 20480 + 20480*T}')
        a(f's_mul_i32 s{sK+9}, s{sW}, 20480')
        for p in range(4):
            a(f's_mul_i32 s{sA+1}, s{sTP+p}, 5120'); a(f's_add_u32 s{sA+1}, s{sA+1}, s{sK+9}'); a(f'v_add_u32 v{vB+p}, s{sA+1}, v{vL16}')
        a(f's_add_u32 s{sA+4}, s{sRB}, s{sA+4}'); a(f's_cmp_lt_u32 s{sA+4}, 32'); a(f's_cselect_b32 s{sA+6}, s{sTAG}, 0'); a(f's_cselect_b32 s{sA+1}, 0, 0x80000000')
        a(f's_lshl_b32 s{sA+4}, s{sA+4}, 2'); a(f's_add_u32 s{sA+4}, s{sA+4}, s{sW}'); a(f's_lshl_b32 s{sA+4}, s{sA+4}, 10'); a(f's_add_u32 s{sA+4}, s{sA+4}, {HALO}')
        a(f's_and_b32 s{sA+4}, s{sA+4}, 0xffffff'); a(f's_or_b32 s{sA+4}, s{sA+4}, s{sA+1}')
        a('v_and_b32 v4, 7, v0'); a('v_lshlrev_b32 v4, 4, v4'); a('v_and_b32 v5, 8, v0'); a('v_lshlrev_b32 v84, 6, v5'); a('v_add_u32 v4, v4, v84'); a(f'v_add_u32 v4, s{sA+4}, v4')
        a('v_lshrrev_b32 v84, 1, v0'); a('v_and_b32 v84, 3, v84'); a('v_lshlrev_b32 v84, 4, v84'); a('v_and_b32 v85, 1, v0'); a('v_add_u32 v84, v84, v85')
        a(f'v_add_u32 v84, s{sA+7}, v84'); a('v_lshlrev_b32 v84, 4, v84'); a(f's_add_u32 s{sA+5}, s{sA+5}, s{sK+9}'); a(f'v_add_u32 v84, s{sA+5}, v84')
        a('v_add_u32 v85, v84, v5'); a('v_mul_u32_u24 v5, 384, v5'); a('v_add_u32 v84, v84, v5')
    poll([(vFL, sA)], 1, between=between)
    stamp('F1')
    tD = {}
    def hload():
        for k in range(4): t = a.vm(f'buffer_load_dwordx4 {V4(HG+4*k)}, v4, {ws()}, 0 offen offset:{128*k} sc1')
        return t
    for s in range(5):
        for T in range(4):
            a(f's_add_u32 m0, s{sK+9}, {5120*T + (4096 if s == 4 else 0)}')
            if s == 4: a(f's_add_u32 s{sK+T}, s{sK+T}, 4096')
            if T == 0: a(f's_mov_b64 exec, s[{sK+4}:{sK+5}]')
            elif T == 1: a('s_mov_b64 exec, -1')
            elif T == 3: a(f's_mov_b64 exec, s[{sK+6}:{sK+7}]')
            else: a('s_nop 0')
            tD[s] = a.vm(f'buffer_load_dwordx4 v3, {ws()}, s{sK+T} offen offset:{(s%4)*1024} sc1 lds')
        if s == 0: a('s_mov_b64 exec, -1'); tH = hload()
    a('s_mov_b64 exec, -1')
    LH = a.newlabel('hchk'); LO = a.newlabel('hok')
    a(f's_mov_b32 s{sCNT}, 0x20000')
    a.wait_vm(tH)
    a.label(LH)
    for k in range(4): a(f'v_xor_b32 v{HG+4*k+3}, s{sA+6}, v{HG+4*k+3}')
    a(f'v_or3_b32 v{HG+3}, v{HG+3}, v{HG+7}, v{HG+11}'); a(f'v_or_b32 v{HG+3}, v{HG+3}, v{HG+15}')
    a(f'v_cmp_ne_u32 vcc, 0, v{HG+3}'); a('s_nop 1'); a(f's_cbranch_vccz {LO}')
    sv = (a.vm_n, a.vm_done)
    a(f's_sub_u32 s{sCNT}, s{sCNT}, 1'); a('s_cbranch_scc1 END')
    hload(); a.wait_all_vm(); a(f's_branch {LH}')
    a.vm_n, a.vm_done = sv
    a.label(LO)
    a(f'v_mov_b32 v{HG+3}, v{HG+12}'); a(f'v_mov_b32 v{HG+7}, v{HG+13}')
    a(f's_mov_b64 exec, s[{sK+10}:{sK+11}]')
    a.ds(f'ds_write_b128 v84, {V4(HG)}'); a.ds(f'ds_write_b128 v84, {V4(HG+4)} offset:1024'); a.ds(f'ds_write_b64 v85, {V2(HG+8)} offset:2048')
    a('s_mov_b64 exec, -1')
    stamp('g2h')
    U = units(5); tB = {}
    def rdB(n):
        s, p = U[n]; o = BR + 4*(n % NB)
        a.wait_vm(tD[s])
        tB[n] = a.ds(f'ds_read_b128 {V4(o)}, v{vB+p} offset:{1024*s}')
    def acc(p, jt): return V4(OA + 4*jt) if p == 3 else Q(85 + 5*p + jt)
    for n in range(LA): rdB(n)
    fill = []
    for n, (s, p) in enumerate(U):
        o = BR + 4*(n % NB)
        a.wait_lg(tB[n])
        for jt in range(5):
            a(f'{MF} {acc(p, jt)}, {Q(25+5*s+jt)}, {V4(o)}, {"0" if (s == 0 and p < 3) else acc(p, jt)}')
            if jt == 0 and n + LA < len(U): rdB(n + LA)
            if p == 3: wload(W4Q(5*s+jt), sU1, 5*s + jt)
            if jt >= 1 and fill: a(fill.pop(0))
        if s == 4 and p < 3:
            fill = [f'ds_write_b128 v{vRW+p}, {acc(p, jt)} offset:{1024*jt}' for jt in range(5)]
    assert not fill
    stamp('g2loop')
    a(f's_add_u32 s{sA}, s{sK+8}, {X1F}')
    a(f's_lshl_b32 s{sA+1}, s{sE}, 11'); a(f's_add_u32 s{sA+1}, s{sA+1}, s{sA}')
    a(f's_lshl_b32 s{sA+2}, s{sE}, 3'); a(f's_add_u32 s{sA+2}, s{sA+2}, s{sA}'); a(f's_add_u32 s{sA+2}, s{sA+2}, 4096')
    a(f's_lshl_b32 s{sA+3}, s{sRB}, 2'); a(f's_add_u32 s{sA+3}, s{sA+3}, s{sW}'); a(f's_lshl_b32 s{sA+3}, s{sA+3}, 3'); a(f's_add_u32 s{sA+3}, s{sA+3}, s{sO}')
    a(f's_lshl_b32 s{sA+3}, s{sA+3}, 7'); a(f's_add_u32 s{sA+3}, s{sA+3}, {ST}')
    a('v_mov_b32 v1, 0x3f803f80'); a('v_and_b32 v6, 15, v0'); a('v_lshlrev_b32 v6, 3, v6')
    for k in range(4): a(f'v_mov_b32 v{2+k}, 0')
    barrier()
    stamp('B7')
    P = [196, 216, 236]; tp = []
    for jt in range(5):
        for k in range(3): t = a.ds(f'ds_read_b128 {V4(P[k]+4*jt)}, v{vRR} offset:{5120*k + 1024*jt}')
        tp.append(t)
    for jt in range(5):
        a.wait_lg(tp[jt])
        for k in range(2):
            r = 4*jt + 2*k
            a(f'v_pk_add_f32 {V2(P[0]+r)}, {V2(P[0]+r)}, {V2(P[1]+r)}'); a(f'v_pk_add_f32 {V2(OA+r)}, {V2(OA+r)}, {V2(P[2]+r)}')
        for k in range(2):
            r = 4*jt + 2*k
            a(f'v_pk_add_f32 {V2(OA+r)}, {V2(OA+r)}, {V2(P[0]+r)}')
        for k in range(2): a(f'v_cvt_pk_bf16_f32 v{vX1+2*jt+k}, v{OA+4*jt+2*k}, v{OA+4*jt+2*k+1}')
        for k in range(2):
            r = vX1 + 2*jt + k
            a(f'v_dot2_f32_bf16 v{2+2*k}, v{r}, v1, v{2+2*k}'); a(f'v_dot2_f32_bf16 v{3+2*k}, v{r}, v{r}, v{3+2*k}')
        if jt == 1: store2(f'buffer_store_dwordx4 {V4(vX1)}, v{vL16}', f's{sA+1} offen')
        if jt == 3: store2(f'buffer_store_dwordx4 {V4(vX1+4)}, v{vL16}', f's{sA+1} offen offset:1024')
        if jt == 4: store2(f'buffer_store_dwordx2 {V2(vX1+8)}, v{vL16}', f's{sA+2} offen')
    a('v_pk_add_f32 v[2:3], v[2:3], v[4:5]')
    qreduce(2, 3)
    a('s_mov_b64 exec, 0xffff')
    t = store2('buffer_store_dwordx2 v[2:3], v6', f's{sA+3} offen')
    a('s_mov_b64 exec, -1')
    stamp('g2st')
    return t

def g3(tok):
    AC = [8, 20]; CS = 32; BR = 44; NB = 6; LA = 5; SR = 68; vB = 85
    STB = STX + 4096
    for k in range(4): a(f'v_mov_b32 v{BR+k}, 0x3f803f80')
    def colsum(s0, s1):
        for s in range(s0, s1):
            for jt in range(3): a(f'{MF} {V4(CS+4*jt)}, {W3Q(3*s+jt)}, {V4(BR)}, {"0" if s == 0 else V4(CS+4*jt)}')
    colsum(0, 8)
    own_flag(F2, tok, 4)
    stamp('g2end')
    a(f's_mov_b32 s{sA}, {F2}')
    def between():
        colsum(8, 20)
        a(f's_mul_i32 s{sA+1}, s{sRB}, 81920'); a(f's_mul_i32 s{sA+2}, s{sW}, 5120'); a(f's_add_u32 s{sA+1}, s{sA+1}, s{sA+2}')
        a(f's_add_u32 s{sA+1}, s{sA+1}, {X1F}')
        a(f's_lshl_b32 s{sA+3}, s{sRB}, 12'); a(f's_lshl_b32 s{sA+4}, s{sW}, 8'); a(f's_add_u32 s{sA+3}, s{sA+3}, s{sA+4}'); a(f's_add_u32 s{sA+3}, s{sA+3}, {ST}')
        a(f's_lshl_b32 s{sA+4}, s{sW}, 10'); a(f's_add_u32 s{sA+5}, s{sA+4}, {STB}'); a(f's_add_u32 s{sA+4}, s{sA+4}, {STX}')
        a('v_lshrrev_b32 v2, 4, v0'); a('v_and_b32 v3, 15, v0')
        a('v_lshlrev_b32 v4, 10, v2'); a('v_lshlrev_b32 v5, 4, v3'); a('v_add_u32 v4, v4, v5')
        a(f'v_add_u32 v7, s{sA+5}, v5'); a(f'v_add_u32 v6, s{sA+5}, v{vL16}')
        a('v_lshlrev_b32 v2, 8, v2'); a('v_lshlrev_b32 v3, 3, v3'); a('v_add_u32 v5, v2, v3'); a(f'v_add_u32 v5, {STX}, v5')
        a(f'v_mov_b32 v{vB}, v{vL16}')
        a(f's_mul_i32 s{sK}, s{sRB}, 196608'); a(f's_mul_i32 s{sK+1}, s{sO}, 24576'); a(f's_add_u32 s{sK}, s{sK}, s{sK+1}')
        a(f's_lshr_b32 s{sK+1}, s{sW}, 1'); a(f's_mul_i32 s{sK+1}, s{sK+1}, 12288'); a(f's_add_u32 s{sK}, s{sK}, s{sK+1}'); a(f's_add_u32 s{sK}, s{sK}, {HF}')
        a(f's_and_b32 s{sK+3}, s{sW}, 1'); a(f's_lshl_b32 s{sK+1}, s{sK+3}, 12'); a(f's_add_u32 s{sK+1}, s{sK+1}, s{sK}')
        a(f's_lshl_b32 s{sK+2}, s{sK+3}, 3'); a(f's_add_u32 s{sK+2}, s{sK+2}, s{sK}'); a(f's_add_u32 s{sK+2}, s{sK+2}, 8192')
        a(f's_mov_b32 m0, s{sA+4}')
    poll([(vFL, sA)], 1, between=between)
    stamp('F2')
    a.vm(f'buffer_load_dwordx4 v4, {ws()}, s{sA+3} offen sc1 lds')
    tD = {}
    for T in range(4):
        a(f's_add_u32 m0, s{sA+2}, {20480*T}')
        if T: a(f's_add_u32 s{sA+1}, s{sA+1}, {20480 - 4096}')
        else: a('s_nop 0')
        for i in range(4): a.vm(f'buffer_load_dwordx4 v{vL16}, {ws()}, s{sA+1} offen offset:{1024*i} sc1 lds')
        a(f's_add_u32 m0, s{sA+2}, {20480*T + 4096}'); a(f's_add_u32 s{sA+1}, s{sA+1}, 4096')
        tD[T] = a.vm(f'buffer_load_dwordx4 v{vL16}, {ws()}, s{sA+1} offen sc1 lds')
    if OPT['warm']:
        a('v_lshlrev_b32 v2, 7, v0'); a(f's_mul_i32 s{sA+6}, s{sK+3}, 4096'); a(f's_add_u32 s{sA+6}, s{sA+6}, s{sK}')
        a.vm(f'buffer_load_dword v4, v2, s[{R_F}:{R_F+3}], s{sA+6} offen sc1')
    if OPT['wb'] & 2: wbl2(4)
    a(f's_mov_b32 s{sA+1}, 0x3acccccd')
    a.wait_vm(tD[0]); a('s_barrier')
    stamp('B9')
    tB = {}
    def rdB(n):
        T, s = divmod(n, 20)
        if s == 0 and T: a.wait_vm(tD[T]); a('s_barrier'); a(f'v_add_u32 v{vB}, 20480, v{vB}')
        tB[n] = a.ds(f'ds_read_b128 {V4(BR+4*(n%NB))}, v{vB} offset:{1024*s}')
    for n in range(LA): rdB(n)
    for k in range(8): tS = a.ds(f'ds_read_b64 {V2(SR+2*k)}, v5 offset:{1024*(k>>1) + 128*(k&1)}')
    st = [('lg', tS)]
    for k in (0, 4, 8, 12): st += [f'v_add_f32 v{SR+k}, v{SR+k}, v{SR+k+2}', f'v_add_f32 v{SR+k+1}, v{SR+k+1}, v{SR+k+3}']
    for k in (0, 8): st += [f'v_add_f32 v{SR+k}, v{SR+k}, v{SR+k+4}', f'v_add_f32 v{SR+k+1}, v{SR+k+1}, v{SR+k+5}']
    s_, q_ = SR, SR + 1
    st += [f'v_add_f32 v{s_}, v{s_}, v{SR+8}', f'v_add_f32 v{q_}, v{q_}, v{SR+9}',
           f'v_mul_f32 v{s_}, s{sA+1}, v{s_}', f'v_mul_f32 v{q_}, s{sA+1}, v{q_}', f'v_fma_f32 v{q_}, -v{s_}, v{s_}, v{q_}', f'v_max_f32 v{q_}, 0, v{q_}',
           f'v_cvt_pk_bf16_f32 v{s_}, -v{s_}, v{q_}', f'v_and_b32 v{q_}, 0xffff0000, v{s_}', f'v_lshlrev_b32 v{s_}, 16, v{s_}',
           f'v_add_f32 v{q_}, 0x3727c5ac, v{q_}', f'v_cvt_pk_bf16_f32 v{q_}, v{q_}, v{q_}', f'v_lshlrev_b32 v{q_}, 16, v{q_}', f'v_sqrt_f32 v{q_}, v{q_}',
           f'v_cvt_pk_bf16_f32 v{q_}, v{q_}, v{q_}', f'v_lshlrev_b32 v{SR+3}, 16, v{q_}', f'v_rcp_f32 v{q_}, v{SR+3}',
           f'v_mul_f32 v{SR+2}, v{q_}, v{q_}', f'v_mul_f32 v{SR+2}, {hex(K2)}, v{SR+2}', f'v_mul_f32 v{SR+2}, v{SR+2}, v{q_}', f'v_mul_f32 v{q_}, {hex(K1)}, v{q_}',
           f'ds_write_b128 v6, {V4(SR)}']
    st += [f'ds_read_b128 {V4(SR+4*T)}, v7 offset:{256*T}' for T in range(4)]
    def gelu(T):
        A_ = AC[T & 1]; R = SR + 4*T; L = []
        tmp = [1, 2, 3, 84]
        for jt in range(3):
            z = [A_ + 4*jt + i for i in range(4)]
            L += [f'v_fma_f32 v{z[i]}, v{CS+4*jt+i}, v{R}, v{z[i]}' for i in range(4)]
            L += [f'v_mul_f32 v{tmp[i]}, v{z[i]}, v{z[i]}' for i in range(4)]
            L += [f'v_fma_f32 v{tmp[i]}, v{tmp[i]}, v{R+2}, v{R+1}' for i in range(4)]
            L += [f'v_mul_f32 v{tmp[i]}, v{tmp[i]}, v{z[i]}' for i in range(4)]
            L += [f'v_exp_f32 v{tmp[i]}, v{tmp[i]}' for i in range(4)]
            L += [f'v_fma_f32 v{tmp[i]}, v{tmp[i]}, v{R+3}, v{R+3}' for i in range(4)]
            L += [f'v_rcp_f32 v{tmp[i]}, v{tmp[i]}' for i in range(4)]
            L += [f'v_mul_f32 v{z[i]}, v{z[i]}, v{tmp[i]}' for i in range(4)]
            L += [f'v_cvt_pk_bf16_f32 v{A_+2*jt+k}, v{z[2*k]}, v{z[2*k+1]}' for k in range(2)]
            if jt == 1: L.append(('st', f'buffer_store_dwordx4 {V4(A_)}, v{vL16}', f's{sK+1} offen offset:{1024*T}'))
        L.append(('st', f'buffer_store_dwordx2 {V2(A_+4)}, v{vL16}', f's{sK+2} offen offset:{1024*T}'))
        return L
    last = [None]
    def emit(x):
        if isinstance(x, str):
            a(x)
            if x.startswith('ds_read'): last[0] = a.lg_n
        elif x[0] == 'lg': a.wait_lg(x[1])
        else: store2(x[1], x[2])
    fill = st; w4 = list(range(25, 40))
    for n in range(80):
        T, s = divmod(n, 20); o = BR + 4*(n % NB)
        if s == 0 and T:
            assert not fill
            fill = gelu(T - 1)
            if T == 1: a.wait_lg(last[0]); stamp('g3p1')
        for jt in range(3):
            if jt == 0: a.wait_lg(tB[n])
            r = AC[T & 1] + 4*jt
            a(f'{MF} {V4(r)}, {W3Q(3*s+jt)}, {V4(o)}, {"0" if s == 0 else V4(r)}')
            slots = 2
            if jt == 0 and n + LA < 80: rdB(n + LA); slots = 1
            f = 3*s + jt
            if T == 3 and f < 20: wload(W4Q(40+f), sU1, 40 + f)
            elif T == 0 and s >= 10 and jt and w4: g = w4.pop(0); wload(W4Q(g), sU1, g)
            if T and s == 0 and jt < 2: slots = 0
            if T == 0 and s < 1: slots = 0
            left = 60 - f
            while fill and (slots > 0 or len(fill) > 2*left - 2): emit(fill.pop(0)); slots -= 1
    assert not fill and not w4
    stamp('g3loop')
    a('s_barrier')
    A_ = AC[1]; R = SR + 12; T = BR
    Z = [A_ + 2*k for k in range(6)]; TT = [T + 2*k for k in range(6)]
    for k, z in enumerate(Z): a(f'v_pk_fma_f32 {V2(z)}, {V2(CS+2*k)}, {V2(R)}, {V2(z)} op_sel_hi:[1,0,1]')
    for z, t in zip(Z, TT): a(f'v_pk_mul_f32 {V2(t)}, {V2(z)}, {V2(z)}')
    for z, t in zip(Z, TT): a(f'v_pk_fma_f32 {V2(t)}, {V2(t)}, {V2(R+2)}, {V2(R)} op_sel:[0,0,1] op_sel_hi:[1,0,1]')
    for z, t in zip(Z, TT): a(f'v_pk_mul_f32 {V2(t)}, {V2(t)}, {V2(z)}')
    for z, t in zip(Z, TT): a(f'v_exp_f32 v{t}, v{t}'); a(f'v_exp_f32 v{t+1}, v{t+1}')
    for z, t in zip(Z, TT): a(f'v_pk_fma_f32 {V2(t)}, {V2(t)}, {V2(R+2)}, {V2(R+2)} op_sel:[0,1,1] op_sel_hi:[1,1,1]')
    for z, t in zip(Z, TT): a(f'v_rcp_f32 v{t}, v{t}'); a(f'v_rcp_f32 v{t+1}, v{t+1}')
    for z, t in zip(Z, TT): a(f'v_pk_mul_f32 {V2(t)}, {V2(t)}, {V2(z)}')
    for k, t in enumerate(TT): a(f'v_cvt_pk_bf16_f32 v{A_+k}, v{t}, v{t+1}')
    store2(f'buffer_store_dwordx4 {V4(A_)}, v{vL16}', f's{sK+1} offen offset:3072')
    t = store2(f'buffer_store_dwordx2 {V2(A_+4)}, v{vL16}', f's{sK+2} offen offset:3072')
    stamp('g3st')
    return t

def g4(tok):
    BR = 28; NB = 8; LA = 4; vB = 60; vO = 64; RS = 66
    a(f's_mov_b32 s{sA+1}, 0xffff0000')
    for k in range(10):
        a(f'v_lshlrev_b32 v{RS+2*k}, 16, v{vHR+k}'); a(f'v_and_b32 v{RS+2*k+1}, s{sA+1}, v{vHR+k}')
    own_flag(F3, tok)
    stamp('g3end')
    a(f's_mov_b32 s{sA}, {F3}')
    def between():
        for k in range(10): a(f'v_lshlrev_b32 v{OA+2*k}, 16, v{vX1+k}'); a(f'v_and_b32 v{OA+2*k+1}, s{sA+1}, v{vX1+k}')
        for k in range(10): a(f'v_pk_add_f32 {V2(OA+2*k)}, {V2(OA+2*k)}, {V2(RS+2*k)}')
        a(f's_mul_i32 s{sA+1}, s{sRB}, 196608'); a(f's_mul_i32 s{sA+2}, s{sW}, 49152'); a(f's_add_u32 s{sA+1}, s{sA+1}, s{sA+2}'); a(f's_add_u32 s{sA+1}, s{sA+1}, {HF}')
        a(f's_mul_i32 s{sA+2}, s{sW}, 20480'); a(f's_add_u32 s{sA+2}, s{sA+2}, {RED}')
        for p in range(4):
            a(f's_lshl_b32 s{sA+3}, s{sTP+p}, 10'); a(f's_add_u32 s{sA+3}, s{sA+3}, s{sA+2}'); a(f'v_add_u32 v{vB+p}, s{sA+3}, v{vL16}')
        for k in range(4): a(f'v_subrev_u32 v{vRW+k}, {RED}, v{vRW+k}')
        a(f'v_and_b32 v{vO}, 15, v0'); a(f'v_mul_u32_u24 v{vO}, 1280, v{vO}'); a('v_lshrrev_b32 v2, 4, v0'); a('v_mul_u32_u24 v2, 40, v2'); a(f'v_add_u32 v{vO}, v{vO}, v2')
        a(f's_lshl_b32 s{sA+6}, s{sRB}, 2'); a(f's_add_u32 s{sA+6}, s{sA+6}, s{sW}'); a(f's_mul_i32 s{sA+6}, s{sA+6}, 20480')
        a(f's_mul_i32 s{sA+7}, s{sO}, 160'); a(f's_add_u32 s{sA+7}, s{sA+7}, s{sA+6}')
    poll([(vFL, sA)], 1, between=between)
    stamp('F3')
    tD = {}
    def dma(s):
        a(f's_add_u32 m0, s{sA+2}, {4096*(s % 5)}')
        if s: a(f's_add_u32 s{sA+1}, s{sA+1}, 4096')
        else: a('s_nop 0')
        for k in range(4): tD[s] = a.vm(f'buffer_load_dwordx4 v{vL16}, {ws()}, s{sA+1} offen offset:{1024*k} sc1 lds')
    for s in range(5): dma(s)
    U = units(12); tB = {}
    def rdB(n):
        s, p = U[n]
        a.wait_vm(tD[s])
        tB[n] = a.ds(f'ds_read_b128 {V4(BR+4*(n%NB))}, v{vB+p} offset:{4096*(s % 5)}')
    def acc(p, jt): return V4(OA + 4*jt) if p == 3 else Q(70 + 5*p + jt)
    for n in range(LA): rdB(n)
    stamp('g4d0')
    fill = []
    for n, (s, p) in enumerate(U):
        o = BR + 4*(n % NB)
        a.wait_lg(tB[n])
        if p == 3 and s + 5 < 12: dma(s + 5)
        if p == 3 and s == 6 and OPT['wb'] & 1: wbl2()
        for jt in range(5):
            a(f'{MF} {acc(p, jt)}, {W4Q(5*s+jt)}, {V4(o)}, {"0" if (s == 0 and p < 3) else acc(p, jt)}')
            if jt == 0 and n + LA < len(U): rdB(n + LA)
            if jt >= 1 and fill: a(fill.pop(0))
        if s == 11 and p < 3:
            fill = [f'ds_write_b128 v{vRW+p}, {acc(p, jt)} offset:{1024*jt}' for jt in range(5)]
    assert not fill
    stamp('g4loop')
    barrier()
    stamp('B12')
    P = [136, 156, 176]; tp = []
    for jt in range(5):
        for k in range(3): t = a.ds(f'ds_read_b128 {V4(P[k]+4*jt)}, v{vRR} offset:{5120*k + 1024*jt}')
        tp.append(t)
    O = f's[{R_OUT}:{R_OUT+3}]'
    for jt in range(5):
        a.wait_lg(tp[jt])
        for k in range(2):
            r = 4*jt + 2*k
            a(f'v_pk_add_f32 {V2(P[0]+r)}, {V2(P[0]+r)}, {V2(P[1]+r)}'); a(f'v_pk_add_f32 {V2(OA+r)}, {V2(OA+r)}, {V2(P[2]+r)}')
        for k in range(2):
            r = 4*jt + 2*k
            a(f'v_pk_add_f32 {V2(OA+r)}, {V2(OA+r)}, {V2(P[0]+r)}')
        for k in range(2): a(f'v_cvt_pk_bf16_f32 v{28+2*jt+k}, v{OA+4*jt+2*k}, v{OA+4*jt+2*k+1}')
        if jt == 1: a.vm(f'buffer_store_dwordx4 v[28:31], v{vO}, {O}, s{sA+7} offen')
        if jt == 3: a.vm(f'buffer_store_dwordx4 v[32:35], v{vO}, {O}, s{sA+7} offen offset:16')
        if jt == 4: a.vm(f'buffer_store_dwordx2 v[36:37], v{vO}, {O}, s{sA+7} offen offset:32')
    if OPT['ts']: a.wait_all()
    stamp('g4end')
```
